```python
import torch

def _softmax(x, axis=-1):
    return torch.softmax(x, dim=axis)

def _gelu(x):
    return torch.nn.functional.gelu(x, approximate='tanh')

def _silu(x):
    return torch.nn.functional.silu(x)

def _sigmoid(x):
    return torch.sigmoid(x)

def _layernorm(x, axis=-1, eps=1e-05):
    m = x.mean(dim=axis, keepdim=True)
    v = x.var(dim=axis, keepdim=True, unbiased=False)
    return (x - m) / torch.sqrt(v + eps)

def _scatter_add(tgt, idx, src, axis=0):
    return tgt.clone().index_add_(axis, idx, src)

def _segment_sum(src, seg, n):
    out = torch.zeros((n,) + src.shape[1:], dtype=src.dtype)
    return out.index_add_(0, seg, src)

def _pad(x, pw):
    flat = tuple((v for pair in reversed(pw) for v in pair))
    return torch.nn.functional.pad(x, flat)
kernel_name = 'adaLN_cond__compressed_kv_cla__dense_activation_relu__prompt'

def setup_inputs():

    _w = lambda a: (lambda t: t.to(torch.bfloat16) if t.is_floating_point() else t)(torch.as_tensor(a))

    def _A_setup():
        B, H, Sq, Sk, D, M = (1, 32, 2048, 2048, 128, 512)
        Dc = 4 * D
        return {'x': _w((lambda *s: torch.randn(*s, dtype=torch.bfloat16) * 0.05)(B, Sq, M)), 'c_kv': _w((lambda *s: torch.randn(*s, dtype=torch.bfloat16) * 1.6)(B, Sk, Dc)), 'w_q': _w((lambda *s: torch.randn(*s, dtype=torch.bfloat16) * 0.8)(M, H, D) * M ** (-0.5)), 'w_uk': _w((lambda *s: torch.randn(*s, dtype=torch.bfloat16) * 0.8)(Dc, H, D) * Dc ** (-0.5)), 'w_uv': _w((lambda *s: torch.randn(*s, dtype=torch.bfloat16) * 1.6)(Dc, H, D) * Dc ** (-0.5)), 'w_o': _w((lambda *s: torch.randn(*s, dtype=torch.bfloat16) * 1.6)(H, D, M) * (H * D) ** (-0.5))}
    _A_in = _A_setup()

    def _B_setup():
        B, S, D, Dff = (1, 2048, 512, 1792)
        return {'x': _w((lambda *s: torch.randn(*s, dtype=torch.bfloat16) * 0.05)(B, S, D)), 'w1': _w((lambda *s: torch.randn(*s, dtype=torch.bfloat16) * 0.05)(D, Dff)), 'w2': _w((lambda *s: torch.randn(*s, dtype=torch.bfloat16) * 0.05)(Dff, D))}
    _B_in = _B_setup()
    return {'A_x': _A_in['x'], 'A_c_kv': _A_in['c_kv'], 'A_w_q': _A_in['w_q'], 'A_w_uk': _A_in['w_uk'], 'A_w_uv': _A_in['w_uv'], 'A_w_o': _A_in['w_o'], 'B_x': _B_in['x'], 'B_w1': _B_in['w1'], 'B_w2': _B_in['w2'], 'c': _w((lambda *s: torch.randn(*s, dtype=torch.bfloat16) * 0.1)(1, 512) * 8.0), 'w_mod': _w((lambda *s: torch.randn(*s, dtype=torch.bfloat16) * 0.1)(512, 6 * 512) * 512 ** (-0.5) * 8.0)}

def reference(A_x, A_c_kv, A_w_q, A_w_uk, A_w_uv, A_w_o, B_x, B_w1, B_w2, c, w_mod):

    def _A_ref(x, c_kv, w_q, w_uk, w_uv, w_o):
        B, Sq, M = (x.shape[0], x.shape[1], x.shape[2])
        Sk = c_kv.shape[1]
        H, D = (w_q.shape[1], w_q.shape[2])
        q = torch.einsum('bqm,mhd->bhqd', x, w_q)
        k = torch.einsum('bkc,chd->bhkd', c_kv, w_uk)
        v = torch.einsum('bkc,chd->bhkd', c_kv, w_uv)
        scores = torch.einsum('bhqd,bhkd->bhqk', q, k) * D ** (-0.5)
        off = Sk - Sq
        qi = torch.arange(Sq)[:, None]
        kj = torch.arange(Sk)[None, :]
        cmask = kj <= qi + off
        scores = torch.where(cmask[None, None], scores, -1000000000.0)
        p = _softmax(scores, axis=-1)
        ctx = torch.einsum('bhqk,bhkd->bhqd', p, v)
        return torch.einsum('bhqd,hdm->bqm', ctx, w_o)

    def _B_ref(x, w1, w2):
        h = torch.einsum('bsd,df->bsf', x, w1)
        zero = torch.zeros_like(h)
        h = torch.maximum(h, zero)
        return torch.einsum('bsf,fd->bsd', h, w2)
    x = A_x
    mod = (_silu(c) @ w_mod).reshape(c.shape[0], 6, 1, -1)
    sa, ca, ga, sb, cb, gb = (mod[:, 0].clone(), mod[:, 1].clone(), mod[:, 2].clone(), mod[:, 3].clone(), mod[:, 4].clone(), mod[:, 5].clone())
    h = _layernorm(x, axis=-1) * (1 + ca) + sa
    x = x + ga * _A_ref(h, A_c_kv, A_w_q, A_w_uk, A_w_uv, A_w_o)
    h = _layernorm(x, axis=-1) * (1 + cb) + sb
    x = x + gb * _B_ref(h, B_w1, B_w2)
    return x
```

```python
import sys

NAME = "adaLN_cond__compressed_kv_cla__dense_activation_relu__prompt"
S, M, H, D, F = 2048, 512, 32, 128, 1792
MB = 1 << 20
KA = dict(x=0, ckv=8, wq=16, wuk=24, wuv=32, wo=40, bx=48, w1=56, w2=64, c=72, wmod=80, out=88, dbg=96, ws=104)
WS = dict(mod=0, h=1 * MB, q=16 * MB, k=32 * MB, vt=48 * MB, ctx=64 * MB, x1=80 * MB, h2=84 * MB, hid=88 * MB, part=96 * MB)
WS_SIZE = 268435456


class Asm:
    def __init__(self):
        self.lines = []
        self.launches = []
        self.descs = []
        self.lbl = 0

    def __call__(self, s):
        import re
        for ln in s.strip("\n").split("\n"):
            m = re.search(r"buffer_.*offset:(\d+)", ln)
            assert not (m and int(m.group(1)) > 4095), ln
            self.lines.append("    " + ln.strip())

    def label(self, name):
        self.lines.append(name + ":")

    def newlabel(self, p="L"):
        self.lbl += 1
        return f"{p}_{self.lbl}"

    def begin(self, kname):
        self.lines.append(f".globl {kname}\n.p2align 8\n.type {kname},@function\n{kname}:")

    def end(self, kname, vgpr, sgpr=100, accum=None):
        self("s_endpgm")
        vg = (vgpr + 3) // 4 * 4
        if accum is None:
            accum = vg
        self.descs.append(f""".amdhsa_kernel {kname}
  .amdhsa_next_free_vgpr {vgpr}
  .amdhsa_next_free_sgpr {sgpr}
  .amdhsa_accum_offset {accum}
  .amdhsa_group_segment_fixed_size 0
  .amdhsa_kernarg_size 112
  .amdhsa_user_sgpr_count 2
  .amdhsa_user_sgpr_kernarg_segment_ptr 1
  .amdhsa_system_sgpr_workgroup_id_x 1
.end_amdhsa_kernel""")

    def launch(self, kname, grid, block, lds):
        self.launches.append(f"; @launch kernel={kname} grid=({grid},1,1) block=({block},1,1) lds={lds}")

    def text(self):
        hdr = "\n".join(self.launches)
        return (hdr + '\n.amdgcn_target "amdgcn-amd-amdhsa--gfx950"\n.text\n' + "\n".join(self.lines)
                + '\n.section .rodata,"a"\n.p2align 6\n' + "\n.p2align 6\n".join(self.descs) + "\n")


def srd(a, sreg, slot, size, tmp=None):
    a(f"s_load_dwordx2 s[{sreg}:{sreg+1}], s[0:1], {slot}")
    a(f"s_mov_b32 s{sreg+2}, {size}")
    a(f"s_mov_b32 s{sreg+3}, 0x00020000")


def srd_off(a, sreg, off):
    if off:
        a(f"s_add_u32 s{sreg}, s{sreg}, {off}")
        a(f"s_addc_u32 s{sreg+1}, s{sreg+1}, 0")


def wave_sum(a, v, tmp, addr):
    for m in (1, 2, 4, 8, 16, 32):
        a(f"v_xor_b32 v{tmp}, {m*4}, v{addr}")
        a(f"ds_bpermute_b32 v{tmp}, v{tmp}, v{v}")
        a("s_waitcnt lgkmcnt(0)")
        a(f"v_add_f32 v{v}, v{v}, v{tmp}")


def k_mod(a):
    kn = "mod_kernel"
    a.begin(kn)
    NWG = 96
    a(f"s_cmp_ge_u32 s2, {NWG}")
    a("s_cbranch_scc1 mod_done")
    srd(a, 8, KA["c"], 1024)
    srd(a, 12, KA["wmod"], 512 * 3072 * 2)
    srd(a, 16, KA["ws"], 3072 * 4)
    a("""
    v_lshrrev_b32 v1, 6, v0          ; wave
    v_and_b32 v2, 63, v0             ; lane
    v_lshrrev_b32 v3, 4, v2
    v_and_b32 v4, 15, v2
    v_lshl_add_u32 v5, v1, 7, v3
    v_lshlrev_b32 v6, 1, v5          ; c byte off
    s_lshl_b32 s3, s2, 6
    v_lshlrev_b32 v7, 2, v4          ; colpair*4
    v_add_u32 v7, s3, v7
    s_movk_i32 s4, 6144
    v_mul_lo_u32 v8, v5, s4
    v_add_u32 v7, v7, v8             ; w off
    v_mov_b32 v20, 0
    v_mov_b32 v21, 0
    s_waitcnt lgkmcnt(0)
    """)
    for i in range(32):
        a(f"buffer_load_ushort v{32+i}, v6, s[8:11], 0 offen offset:{i*8}")
    for i in range(32):
        a(f"s_mov_b32 s5, {i*4*6144}")
        a(f"buffer_load_dword v{64+i}, v7, s[12:15], s5 offen")
    for i in range(32):
        a(f"s_waitcnt vmcnt({32+31-i})")
        a(f"v_lshlrev_b32 v{32+i}, 16, v{32+i}")
        a(f"v_mul_f32 v22, 0xbfb8aa3b, v{32+i}")
        a("v_exp_f32 v22, v22")
        a("s_nop 0")
        a("v_add_f32 v22, 1.0, v22")
        a("v_rcp_f32 v22, v22")
        a("s_nop 0")
        a(f"v_mul_f32 v{32+i}, v{32+i}, v22")
    for i in range(32):
        a(f"s_waitcnt vmcnt({31-i})")
        a(f"v_lshlrev_b32 v22, 16, v{64+i}")
        a(f"v_and_b32 v23, 0xffff0000, v{64+i}")
        a(f"v_fmac_f32 v20, v22, v{32+i}")
        a(f"v_fmac_f32 v21, v23, v{32+i}")
    a("""
    v_lshlrev_b32 v9, 3, v0
    ds_write_b64 v9, v[20:21]
    s_waitcnt lgkmcnt(0)
    s_barrier
    v_cmp_gt_u32 vcc, 32, v0
    s_and_saveexec_b64 s[20:21], vcc
    s_cbranch_execz mod_done
    v_lshrrev_b32 v10, 1, v0
    v_and_b32 v11, 1, v0
    v_lshlrev_b32 v10, 3, v10
    v_lshl_add_u32 v10, v11, 2, v10   ; (t>>1)*8 + (t&1)*4
    v_mov_b32 v20, 0
    """)
    for i in range(16):
        a(f"ds_read_b32 v{32+i}, v10 offset:{i*128}")
    a("s_waitcnt lgkmcnt(0)")
    for i in range(16):
        a(f"v_add_f32 v20, v20, v{32+i}")
    a("""
    s_lshl_b32 s3, s2, 7
    v_lshlrev_b32 v12, 2, v0
    v_add_u32 v12, s3, v12
    buffer_store_dword v20, v12, s[16:19], 0 offen
    """)
    a.label("mod_done")
    a.end(kn, 96)
    a.launch(kn, NWG, 256, 2048)


def k_ln(a, kn, src_slot, src_off, src_f32, sh_off, sc_off, dst_off):
    a.begin(kn)
    NWG = S // 4
    done = a.newlabel("ln_done")
    a(f"s_cmp_ge_u32 s2, {NWG}")
    a(f"s_cbranch_scc1 {done}")
    esz = 4 if src_f32 else 2
    srd(a, 8, src_slot, S * M * esz)
    srd(a, 12, KA["ws"], 3072 * 4)
    srd(a, 16, KA["ws"], S * M * 2)
    a(f"""
    v_lshrrev_b32 v1, 6, v0
    v_and_b32 v2, 63, v0
    s_lshl_b32 s3, s2, 2
    v_add_u32 v1, s3, v1             ; row
    v_lshlrev_b32 v3, {9 + (2 if src_f32 else 1)}, v1
    v_lshl_add_u32 v3, v2, {5 if src_f32 else 4}, v3   ; src off
    v_lshlrev_b32 v4, 5, v2          ; mod off lane*32B
    v_lshlrev_b32 v5, 10, v1
    v_lshl_add_u32 v5, v2, 4, v5     ; dst off
    v_lshlrev_b32 v6, 2, v2          ; lane*4
    s_waitcnt lgkmcnt(0)
    """)
    srd_off(a, 8, src_off)
    srd_off(a, 16, dst_off)
    if src_f32:
        a("buffer_load_dwordx4 v[8:11], v3, s[8:11], 0 offen")
        a("buffer_load_dwordx4 v[12:15], v3, s[8:11], 0 offen offset:16")
    else:
        a("buffer_load_dwordx4 v[24:27], v3, s[8:11], 0 offen")
    a(f"s_mov_b32 s4, {sc_off}")
    a(f"s_mov_b32 s5, {sh_off}")
    a(f"buffer_load_dwordx4 v[32:35], v4, s[12:15], s4 offen")
    a(f"buffer_load_dwordx4 v[36:39], v4, s[12:15], s4 offen offset:16")
    a(f"buffer_load_dwordx4 v[40:43], v4, s[12:15], s5 offen")
    a(f"buffer_load_dwordx4 v[44:47], v4, s[12:15], s5 offen offset:16")
    a("s_waitcnt vmcnt(4)")
    if not src_f32:
        for i in range(4):
            a(f"v_lshlrev_b32 v{8+2*i}, 16, v{24+i}")
            a(f"v_and_b32 v{9+2*i}, 0xffff0000, v{24+i}")
    a("v_add_f32 v16, v8, v9")
    for i in range(2, 8):
        a(f"v_add_f32 v16, v16, v{8+i}")
    wave_sum(a, 16, 17, 6)
    a("v_mul_f32 v16, 0x3b000000, v16")
    for i in range(8):
        a(f"v_sub_f32 v{8+i}, v{8+i}, v16")
    a("v_mul_f32 v18, v8, v8")
    for i in range(1, 8):
        a(f"v_fmac_f32 v18, v{8+i}, v{8+i}")
    wave_sum(a, 18, 17, 6)
    a("""
    v_mov_b32 v19, 0x3727c5ac
    v_fmac_f32 v19, 0x3b000000, v18
    v_rsq_f32 v19, v19
    s_waitcnt vmcnt(0)
    """)
    for i in range(8):
        a(f"v_add_f32 v{32+i}, 1.0, v{32+i}")
        a(f"v_mul_f32 v{8+i}, v{8+i}, v19")
        a(f"v_fma_f32 v{8+i}, v{8+i}, v{32+i}, v{40+i}")
    for i in range(4):
        a(f"v_cvt_pk_bf16_f32 v{20+i}, v{8+2*i}, v{9+2*i}")
    a("buffer_store_dwordx4 v[20:23], v5, s[16:19], 0 offen")
    a.label(done)
    a.end(kn, 48)
    a.launch(kn, NWG, 256, 0)


PERM4 = [0, 2, 1, 3]


def gemm_prologue_common(a):
    a("""
    v_and_b32 v26, 63, v0
    v_and_b32 v24, 31, v0
    v_bfe_u32 v25, v0, 5, 1
    v_lshrrev_b32 v1, 6, v0
    s_nop 0
    v_readfirstlane_b32 s40, v1
    s_nop 3
    s_lshr_b32 s41, s40, 1
    s_and_b32 s42, s40, 1
    s_lshl_b32 s43, s40, 4
    s_lshl_b32 s40, s40, 12
    """)


def gemm_job(a, job):
    lda, ldb, nk = job["lda"], job["ldb"], job["nk"]
    a("""
    v_lshrrev_b32 v1, 3, v26         ; lane>>3
    v_lshrrev_b32 v2, 4, v26         ; lane>>4
    v_and_b32 v3, 7, v26
    s_lshl_b32 s4, s43, 1            ; w*32
    s_add_u32 s4, s4, s33            ; m0 + w*32
    v_add_u32 v1, s4, v1
    """)
    a(f"s_mov_b32 s5, {lda}")
    for i in range(4):
        a(f"v_add_u32 v4, {i*4}, v2")
        a("v_and_b32 v4, 7, v4")
        a("v_xor_b32 v4, v4, v3")
        a(f"v_add_u32 v5, {i*8}, v1")
        a("v_mul_lo_u32 v5, v5, s5")
        a(f"v_lshl_add_u32 v{10+i}, v4, 4, v5")
    a("""
    v_bfe_u32 v3, v26, 2, 2
    v_xor_b32 v3, v3, v2
    v_lshlrev_b32 v3, 6, v3
    v_and_b32 v4, 3, v26
    v_lshl_add_u32 v3, v4, 4, v3
    s_lshl_b32 s4, s34, 1
    v_add_u32 v3, s4, v3             ; + n0*2
    v_add_u32 v1, s43, v2            ; w*16 + lane>>4
    """)
    a(f"s_mov_b32 s5, {ldb}")
    for i in range(4):
        pi = PERM4[i] if job.get("permK") else i
        a(f"v_add_u32 v5, {pi*4}, v1")
        a("v_mul_lo_u32 v5, v5, s5")
        a(f"v_add_u32 v{14+i}, v5, v3")
    a("""
    s_lshl_b32 s4, s41, 6
    v_add_u32 v1, s4, v24            ; row
    v_bfe_u32 v2, v1, 1, 3           ; sw
    v_lshlrev_b32 v1, 7, v1
    """)
    for ks in range(4):
        a(f"v_add_u32 v3, {ks*2}, v25")
        a("v_xor_b32 v3, v3, v2")
        a(f"v_lshl_add_u32 v{18+ks}, v3, 4, v1")
    a("""
    v_bfe_u32 v1, v26, 2, 2          ; r
    v_lshrrev_b32 v2, 5, v26         ; G>>1
    v_lshlrev_b32 v2, 11, v2
    v_lshl_add_u32 v2, v1, 8, v2
    v_bfe_u32 v3, v26, 4, 1
    v_lshl_add_u32 v2, v3, 5, v2
    v_and_b32 v3, 3, v26
    v_lshl_add_u32 v2, v3, 3, v2
    v_add_u32 v2, 16384, v2
    s_lshl_b32 s4, s42, 1
    v_xor_b32 v3, s4, v1
    v_lshl_add_u32 v22, v3, 6, v2
    s_add_u32 s4, s4, 1
    v_xor_b32 v3, s4, v1
    v_lshl_add_u32 v23, v3, 6, v2
    """)
    for r in range(96, 160):
        a(f"v_mov_b32 v{r}, 0")
    a("s_mov_b32 s31, 0")
    a("s_mov_b32 s32, 0")

    def dma(buf):
        for i in range(4):
            a(f"s_add_u32 m0, s40, {buf*32768 + i*1024}")
            a("s_nop 0")
            a(f"buffer_load_dwordx4 v{10+i}, s[8:11], s31 offen lds")
        for i in range(4):
            a(f"s_add_u32 m0, s40, {buf*32768 + 16384 + i*1024}")
            a("s_nop 0")
            a(f"buffer_load_dwordx4 v{14+i}, s[12:15], s32 offen lds")
        a("s_add_u32 s31, s31, 128")
        a(f"s_add_u32 s32, s32, {64*ldb}")

    def reads(buf, ks):
        for t in range(2):
            a(f"ds_read_b128 v[{32+ks*8+t*4}:{35+ks*8+t*4}], v{18+ks} offset:{buf*32768 + t*4096}")
        for u in range(2):
            for hh in range(2):
                r = 64 + ks * 8 + u * 4 + hh * 2
                a(f"ds_read_b64_tr_b16 v[{r}:{r+1}], v{22+u} offset:{buf*32768 + ks*4096 + hh*1024}")

    def mfmas(ks):
        for t in range(2):
            for u in range(2):
                c = 96 + (t * 2 + u) * 16
                fa = f"v[{32+ks*8+t*4}:{35+ks*8+t*4}]"
                fb = f"v[{64+ks*8+u*4}:{67+ks*8+u*4}]"
                if job["swap"]:
                    fa, fb = fb, fa
                a(f"v_mfma_f32_32x32x16_bf16 v[{c}:{c+15}], {fa}, {fb}, v[{c}:{c+15}]")

    def step(buf, last):
        if not last:
            dma(1 - buf)
            a("s_waitcnt vmcnt(8)")
        else:
            a("s_waitcnt vmcnt(0)")
        a("s_barrier")
        reads(buf, 0)
        reads(buf, 1)
        a("s_waitcnt lgkmcnt(6)")
        mfmas(0)
        reads(buf, 2)
        a("s_waitcnt lgkmcnt(6)")
        mfmas(1)
        reads(buf, 3)
        a("s_waitcnt lgkmcnt(6)")
        mfmas(2)
        a("s_waitcnt lgkmcnt(0)")
        mfmas(3)
        if not last:
            a("s_barrier")

    dma(0)
    npair = nk // 2
    if npair > 1:
        lp = a.newlabel("gloop")
        a(f"s_mov_b32 s30, {npair-1}")
        a.label(lp)
        step(0, False)
        step(1, False)
        a("s_sub_u32 s30, s30, 1")
        a("s_cmp_lg_u32 s30, 0")
        a(f"s_cbranch_scc1 {lp}")
    step(0, False)
    step(1, True)
    a("s_nop 7")
    a("s_nop 7")


def epi_pack_store(a, relu, vaddr_t_stride, vaddr_u_stride, swap):
    for t in range(2):
        for u in range(2):
            c = 96 + (t * 2 + u) * 16
            for p in range(2):
                for j in range(4):
                    r0, r1 = c + p * 8 + j * 2, c + p * 8 + j * 2 + 1
                    if relu:
                        a(f"v_max_f32 v{r0}, 0, v{r0}")
                        a(f"v_max_f32 v{r1}, 0, v{r1}")
                    a(f"v_cvt_pk_bf16_f32 v{32+(t*4+u*2+p)*4+j}, v{r0}, v{r1}")
    for t in range(2):
        for u in range(2):
            off = t * vaddr_t_stride + u * vaddr_u_stride
            a(f"s_mov_b32 s4, {off}")
            for p in range(2):
                r = 32 + (t * 4 + u * 2 + p) * 4
                a(f"buffer_store_dwordx4 v[{r}:{r+3}], v28, s[16:19], s4 offen offset:{p*32}")


def k_qkv(a):
    kn = "qkv_kernel"
    a.begin(kn)
    NT = 16 * 32
    a(f"s_cmp_ge_u32 s2, {3*NT}")
    a("s_cbranch_scc1 qkv_done")
    gemm_prologue_common(a)
    a(f"""
    s_lshr_b32 s35, s2, 9            ; job 0..2
    s_and_b32 s36, s2, {NT-1}
    s_and_b32 s33, s36, 15
    s_lshl_b32 s33, s33, 7           ; m0
    s_lshr_b32 s37, s36, 4           ; head
    s_lshl_b32 s34, s37, 7           ; n0
    s_cmp_eq_u32 s35, 1
    s_cbranch_scc1 qkv_k
    s_cmp_eq_u32 s35, 2
    s_cbranch_scc1 qkv_v
    """)
    common = dict(lda=1024, ldb=8192, nk=8)
    for nm in ("q", "k", "v"):
        a.label("qkv_" + nm)
        if nm == "q":
            srd(a, 8, KA["ws"], S * M * 2)
        else:
            srd(a, 8, KA["ckv"], S * M * 2)
        srd(a, 12, KA[{"q": "wq", "k": "wuk", "v": "wuv"}[nm]], 512 * 4096 * 2)
        srd(a, 16, KA["ws"], 16 * MB)
        a("s_waitcnt lgkmcnt(0)")
        if nm == "q":
            srd_off(a, 8, WS["h"])
        srd_off(a, 16, WS[{"q": "q", "k": "k", "v": "vt"}[nm]])
        gemm_job(a, dict(common, swap=(nm != "v")))
        if nm != "v":
            a("""
            s_lshl_b32 s4, s37, 11
            s_add_u32 s4, s4, s33
            s_lshl_b32 s5, s41, 6
            s_add_u32 s4, s4, s5
            v_add_u32 v28, s4, v24
            v_lshlrev_b32 v28, 8, v28
            s_lshl_b32 s5, s42, 7
            v_add_u32 v28, s5, v28
            v_lshl_add_u32 v28, v25, 4, v28
            """)
            epi_pack_store(a, False, 32 * 256, 64, True)
        else:
            a("""
            s_lshl_b32 s5, s42, 6
            s_add_u32 s4, s34, s5
            v_add_u32 v28, s4, v24
            v_lshlrev_b32 v28, 12, v28
            s_lshl_b32 s5, s41, 6
            s_add_u32 s5, s5, s33
            s_lshl_b32 s5, s5, 1
            v_add_u32 v28, s5, v28
            v_lshl_add_u32 v28, v25, 4, v28
            """)
            epi_pack_store(a, False, 64, 32 * 4096, False)
        a("s_branch qkv_done")
    a.label("qkv_done")
    a.end(kn, 160)
    a.launch(kn, 3 * NT, 256, 65536)


def k_attn(a):
    kn = "attn_kernel"
    a.begin(kn)
    SC = 0x3e0293ee
    import struct, math
    SC = struct.unpack("<I", struct.pack("<f", 128 ** -0.5 * math.log2(math.e)))[0]
    a("s_cmp_ge_u32 s2, 256")
    a("s_cbranch_scc1 attn_done")
    srd(a, 8, KA["ws"], 16 * MB)
    srd(a, 12, KA["ws"], 16 * MB)
    srd(a, 16, KA["ws"], 16 * MB)
    srd(a, 20, KA["ws"], 16 * MB)
    a("""
    v_and_b32 v26, 63, v0
    v_and_b32 v24, 31, v0
    v_bfe_u32 v25, v0, 5, 1
    v_lshrrev_b32 v1, 6, v0
    s_nop 0
    v_readfirstlane_b32 s40, v1
    s_nop 3
    s_lshl_b32 s41, s40, 5          ; wave*32
    s_lshl_b32 s43, s40, 4          ; wave*16
    s_lshl_b32 s40, s40, 12
    s_lshr_b32 s33, s2, 3           ; head
    s_and_b32 s34, s2, 7
    s_waitcnt lgkmcnt(0)
    """)
    srd_off(a, 8, WS["k"])
    srd_off(a, 12, WS["vt"])
    srd_off(a, 16, WS["q"])
    srd_off(a, 20, WS["ctx"])
    a("""
    v_lshrrev_b32 v2, 4, v26
    v_and_b32 v3, 15, v26
    s_lshl_b32 s4, s33, 11
    s_add_u32 s4, s4, s43
    v_add_u32 v1, s4, v2
    """)
    for i in range(4):
        a(f"v_add_u32 v4, {i*4}, v2")
        a("v_xor_b32 v4, v4, v3")
        a(f"v_add_u32 v5, {i*4}, v1")
        a("v_lshlrev_b32 v5, 8, v5")
        a(f"v_lshl_add_u32 v{10+i}, v4, 4, v5")
    a("""
    v_lshrrev_b32 v1, 3, v26
    v_and_b32 v3, 7, v26
    s_lshl_b32 s4, s33, 7
    s_add_u32 s4, s4, s41
    v_add_u32 v1, s4, v1
    """)
    for i in range(4):
        a(f"v_add_u32 v4, {i*4}, v2")
        a("v_and_b32 v4, 7, v4")
        a("v_xor_b32 v4, v4, v3")
        a(f"v_add_u32 v5, {i*8}, v1")
        a("v_lshlrev_b32 v5, 12, v5")
        a(f"v_lshl_add_u32 v{14+i}, v4, 4, v5")
    a("v_and_b32 v2, 15, v24")
    a("v_lshlrev_b32 v1, 8, v24")
    for ds in range(8):
        a(f"v_add_u32 v3, {ds*2}, v25")
        a("v_xor_b32 v3, v3, v2")
        a(f"v_lshl_add_u32 v{32+ds}, v3, 4, v1")
    a("v_bfe_u32 v2, v24, 1, 3")
    a("v_lshlrev_b32 v1, 7, v24")
    a("v_add_u32 v1, 16384, v1")
    for ks in range(4):
        a(f"v_add_u32 v3, {ks*2}, v25")
        a("v_xor_b32 v3, v3, v2")
        a(f"v_lshl_add_u32 v{18+ks}, v3, 4, v1")
    a("""
    v_add_u32 v27, s41, v24
    v_lshlrev_b32 v1, 2, v25
    v_sub_u32 v27, v27, v1
    v_mov_b32 v29, 0xf149f2ca
    s_mov_b32 s35, 0
    """)
    QF, SS, PP, KF, VF, OO = 40, 72, 104, 120, 152, 184
    a.label("attn_outer")
    a("""
    s_sub_u32 s4, 15, s34
    s_cmp_eq_u32 s35, 0
    s_cselect_b32 s44, s4, s34       ; qb
    s_add_u32 s36, s44, 1
    s_lshl_b32 s36, s36, 1           ; ntiles
    s_lshl_b32 s4, s33, 11
    s_lshl_b32 s5, s44, 7
    s_add_u32 s4, s4, s5
    s_add_u32 s4, s4, s41
    v_add_u32 v1, s4, v24
    v_lshlrev_b32 v1, 8, v1
    v_lshl_add_u32 v1, v25, 4, v1
    """)
    for ds in range(8):
        a(f"buffer_load_dwordx4 v[{QF+ds*4}:{QF+ds*4+3}], v1, s[16:19], 0 offen offset:{ds*32}")
    for r in range(64):
        a(f"v_mov_b32 v{OO+r}, 0")
    a("""
    v_mov_b32 v30, 0xf149f2ca        ; m
    v_mov_b32 v31, 0                 ; l
    s_mov_b32 s37, 0
    s_mov_b32 s38, 0
    """)

    def dma(buf):
        for i in range(4):
            a(f"s_add_u32 m0, s40, {buf*32768 + i*1024}")
            a("s_nop 0")
            a(f"buffer_load_dwordx4 v{10+i}, s[8:11], s37 offen lds")
        for i in range(4):
            a(f"s_add_u32 m0, s40, {buf*32768 + 16384 + i*1024}")
            a("s_nop 0")
            a(f"buffer_load_dwordx4 v{14+i}, s[12:15], s38 offen lds")
        a("s_add_u32 s37, s37, 16384")
        a("s_add_u32 s38, s38, 128")

    def tile(buf, last, masked):
        if not last:
            dma(1 - buf)
            a("s_waitcnt vmcnt(8)")
        else:
            a("s_waitcnt vmcnt(0)")
        a("s_barrier")
        for half in range(2):
            for d4 in range(4):
                ds = half * 4 + d4
                for kt in range(2):
                    r = KF + (d4 * 2 + kt) * 4
                    a(f"ds_read_b128 v[{r}:{r+3}], v{32+ds} offset:{buf*32768 + kt*8192}")
            for d4 in range(4):
                ds = half * 4 + d4
                a(f"s_waitcnt lgkmcnt({6-2*d4})")
                for kt in range(2):
                    r = KF + (d4 * 2 + kt) * 4
                    c = SS + kt * 16
                    src = "0" if ds == 0 else f"v[{c}:{c+15}]"
                    a(f"v_mfma_f32_32x32x16_bf16 v[{c}:{c+15}], v[{r}:{r+3}], v[{QF+ds*4}:{QF+ds*4+3}], {src}")
        for ks in range(4):
            a(f"ds_read_b128 v[{VF+ks*4}:{VF+ks*4+3}], v{18+ks} offset:{buf*32768}")
        a("s_nop 7")
        a("s_nop 4")
        if masked is not None:
            for kt in range(2):
                for r in range(16):
                    cst = masked * 64 + kt * 32 + 8 * (r >> 2) + (r & 3)
                    a(f"v_cmp_le_i32 vcc, {cst}, v27")
                    a("s_nop 1")
                    a(f"v_cndmask_b32 v{SS+kt*16+r}, v29, v{SS+kt*16+r}, vcc")
        a(f"v_max3_f32 v1, v{SS}, v{SS+1}, v{SS+2}")
        for r in range(3, 31, 2):
            a(f"v_max3_f32 v1, v1, v{SS+r}, v{SS+r+1}")
        a(f"v_max_f32 v1, v1, v{SS+31}")
        a("v_mov_b32 v2, v1")
        a("s_nop 1")
        a("v_permlane32_swap_b32 v1, v2")
        a("s_nop 1")
        a("v_max_f32 v1, v1, v2")
        a(f"v_mul_f32 v1, 0x{SC:08x}, v1")
        a("v_max_f32 v1, v1, v30          ; m_new")
        a("v_sub_f32 v2, v30, v1")
        a("v_exp_f32 v2, v2               ; alpha")
        a("v_mov_b32 v30, v1")
        a(f"s_mov_b32 s4, 0x{SC:08x}")
        for r in range(32):
            a(f"v_fma_f32 v{SS+r}, v{SS+r}, s4, -v1")
        for r in range(32):
            a(f"v_exp_f32 v{SS+r}, v{SS+r}")
        a("v_mul_f32 v31, v31, v2")
        for r in range(64):
            a(f"v_mul_f32 v{OO+r}, v{OO+r}, v2")
        for r in range(32):
            a(f"v_add_f32 v31, v31, v{SS+r}")
        for r in range(16):
            a(f"v_cvt_pk_bf16_f32 v{PP+r}, v{SS+2*r}, v{SS+2*r+1}")
        for db in range(4):
            cur = VF + (db & 1) * 16
            nxt = VF + ((db + 1) & 1) * 16
            if db < 3:
                for ks in range(4):
                    a(f"ds_read_b128 v[{nxt+ks*4}:{nxt+ks*4+3}], v{18+ks} offset:{buf*32768 + (db+1)*4096}")
                a("s_waitcnt lgkmcnt(4)")
            else:
                a("s_waitcnt lgkmcnt(0)")
            c = OO + db * 16
            for ks in range(4):
                a(f"v_mfma_f32_32x32x16_bf16 v[{c}:{c+15}], v[{cur+ks*4}:{cur+ks*4+3}], v[{PP+ks*4}:{PP+ks*4+3}], v[{c}:{c+15}]")
        a("s_barrier")

    dma(0)
    skip = a.newlabel("attn_skip")
    lp = a.newlabel("attn_loop")
    a("s_sub_u32 s36, s36, 2")
    a("s_cmp_eq_u32 s36, 0")
    a(f"s_cbranch_scc1 {skip}")
    a.label(lp)
    tile(0, False, None)
    tile(1, False, None)
    a("s_sub_u32 s36, s36, 2")
    a("s_cmp_lg_u32 s36, 0")
    a(f"s_cbranch_scc1 {lp}")
    a.label(skip)
    tile(0, False, 0)
    tile(1, True, 1)
    a("""
    s_nop 7
    s_nop 4
    v_mov_b32 v2, v31
    s_nop 1
    v_permlane32_swap_b32 v31, v2
    s_nop 1
    v_add_f32 v31, v31, v2
    v_rcp_f32 v31, v31
    s_nop 0
    s_lshl_b32 s5, s44, 7
    s_add_u32 s5, s5, s41
    v_add_u32 v1, s5, v24
    v_lshlrev_b32 v1, 13, v1
    s_lshl_b32 s4, s33, 8
    v_add_u32 v1, s4, v1
    v_lshl_add_u32 v1, v25, 4, v1
    """)
    for r in range(64):
        a(f"v_mul_f32 v{OO+r}, v{OO+r}, v31")
    for r in range(32):
        a(f"v_cvt_pk_bf16_f32 v{KF+r}, v{OO+2*r}, v{OO+2*r+1}")
    for db in range(4):
        for p in range(2):
            r = KF + (db * 2 + p) * 4
            a(f"buffer_store_dwordx4 v[{r}:{r+3}], v1, s[20:23], 0 offen offset:{db*64+p*32}")
    a("""
    s_add_u32 s35, s35, 1
    s_cmp_lt_u32 s35, 2
    s_cbranch_scc1 attn_outer
    """)
    a.label("attn_done")
    a.end(kn, 248)
    a.launch(kn, 256, 256, 65536)


def epi_resid(a, res_f32, gate_off, out_f32):
    a("v_and_b32 v29, 511, v28")
    a("v_lshlrev_b32 v29, 2, v29")
    a(f"v_lshlrev_b32 v30, {2 if res_f32 else 1}, v28")
    a(f"v_lshlrev_b32 v31, {2 if out_f32 else 1}, v28")
    a(f"s_mov_b32 s4, {gate_off}")
    for u in range(2):
        for q in range(4):
            r = 32 + (u * 4 + q) * 4
            a(f"buffer_load_dwordx4 v[{r}:{r+3}], v29, s[24:27], s4 offen offset:{(u*32+q*8)*4}")
    for t in range(2):
        res = 64
        esz = 4 if res_f32 else 2
        a(f"s_mov_b32 s4, {t*32*512*esz}")
        for u in range(2):
            for q in range(4):
                if res_f32:
                    r = res + (u * 4 + q) * 4
                    a(f"buffer_load_dwordx4 v[{r}:{r+3}], v30, s[20:23], s4 offen offset:{(u*32+q*8)*4}")
                else:
                    r = res + (u * 4 + q) * 2
                    a(f"buffer_load_dwordx2 v[{r}:{r+1}], v30, s[20:23], s4 offen offset:{(u*32+q*8)*2}")
        a("s_waitcnt vmcnt(0)")
        a(f"s_mov_b32 s5, {t*32*512*(4 if out_f32 else 2)}")
        for u in range(2):
            c = 96 + (t * 2 + u) * 16
            for q in range(4):
                g = 32 + (u * 4 + q) * 4
                for j in range(4):
                    if res_f32:
                        rr = res + (u * 4 + q) * 4 + j
                        a(f"v_fma_f32 v{c+q*4+j}, v{c+q*4+j}, v{g+j}, v{rr}")
                    else:
                        rr = res + (u * 4 + q) * 2 + j // 2
                        if j % 2 == 0:
                            a(f"v_lshlrev_b32 v1, 16, v{rr}")
                        else:
                            a(f"v_and_b32 v1, 0xffff0000, v{rr}")
                        a(f"v_fma_f32 v{c+q*4+j}, v{c+q*4+j}, v{g+j}, v1")
                if out_f32:
                    a(f"buffer_store_dwordx4 v[{c+q*4}:{c+q*4+3}], v31, s[16:19], s5 offen offset:{(u*32+q*8)*4}")
                else:
                    a(f"v_cvt_pk_bf16_f32 v{c+q*4}, v{c+q*4}, v{c+q*4+1}")
                    a(f"v_cvt_pk_bf16_f32 v{c+q*4+1}, v{c+q*4+2}, v{c+q*4+3}")
                    a(f"buffer_store_dwordx2 v[{c+q*4}:{c+q*4+1}], v31, s[16:19], s5 offen offset:{(u*32+q*8)*2}")


def k_gemm_simple(a, kn, ntm, ntn, A, B, nk, epi):
    a.begin(kn)
    done = a.newlabel("g_done")
    a(f"s_cmp_ge_u32 s2, {ntm*ntn}")
    a(f"s_cbranch_scc1 {done}")
    gemm_prologue_common(a)
    a(f"""
    s_and_b32 s33, s2, {ntm-1}
    s_lshl_b32 s33, s33, 7           ; m0
    s_lshr_b32 s37, s2, {ntm.bit_length()-1}
    s_lshl_b32 s34, s37, 7           ; n0
    """)
    srd(a, 8, A[0], A[3])
    srd(a, 12, B[0], B[3])
    epi("srd")
    a("s_waitcnt lgkmcnt(0)")
    srd_off(a, 8, A[1])
    srd_off(a, 12, B[1])
    epi("off")
    gemm_job(a, dict(lda=A[2], ldb=B[2], nk=nk, swap=True, permK=B[4]))
    epi("go")
    a.label(done)
    a.end(kn, 160)
    a.launch(kn, ntm * ntn, 256, 65536)


def mn_index(a, ld):
    a(f"""
    s_lshl_b32 s5, s41, 6
    s_add_u32 s4, s33, s5
    v_add_u32 v28, s4, v24
    s_mov_b32 s5, {ld}
    v_mul_lo_u32 v28, v28, s5
    s_lshl_b32 s5, s42, 6
    s_add_u32 s5, s5, s34
    v_add_u32 v28, s5, v28
    """)


def k_tail(a):
    def epi_o(ph):
        if ph == "srd":
            srd(a, 16, KA["ws"], S * M * 4); srd(a, 20, KA["x"], S * M * 2); srd(a, 24, KA["ws"], 3072 * 4)
        elif ph == "off":
            srd_off(a, 16, WS["x1"])
        else:
            mn_index(a, 512)
            a("v_lshl_add_u32 v28, v25, 2, v28")
            epi_resid(a, False, 1024 * 4, True)
    k_gemm_simple(a, "oproj_kernel", 16, 4, (KA["ws"], WS["ctx"], 8192, 16 * MB), (KA["wo"], 0, 1024, 4096 * 1024, True), 64, epi_o)
    k_ln(a, "ln2_kernel", KA["ws"], WS["x1"], True, 1536 * 4, 2048 * 4, WS["h2"])

    def epi_f1(ph):
        if ph == "srd":
            srd(a, 16, KA["ws"], S * F * 2)
        elif ph == "off":
            srd_off(a, 16, WS["hid"])
        else:
            mn_index(a, F)
            a("v_lshl_add_u32 v28, v25, 3, v28")
            a("v_lshlrev_b32 v28, 1, v28")
            epi_pack_store(a, True, 32 * F * 2, 64, True)
    k_gemm_simple(a, "ffn1_kernel", 16, 14, (KA["ws"], WS["h2"], 1024, S * M * 2), (KA["w1"], 0, F * 2, 512 * F * 2, False), 8, epi_f1)

    def epi_f2(ph):
        if ph == "srd":
            srd(a, 16, KA["out"], S * M * 2); srd(a, 20, KA["ws"], S * M * 4); srd(a, 24, KA["ws"], 3072 * 4)
        elif ph == "off":
            srd_off(a, 20, WS["x1"])
        else:
            mn_index(a, 512)
            a("v_lshl_add_u32 v28, v25, 2, v28")
            epi_resid(a, True, 2560 * 4, False)
    k_gemm_simple(a, "ffn2_kernel", 16, 4, (KA["ws"], WS["hid"], F * 2, S * F * 2), (KA["w2"], 0, 1024, F * 1024, True), 28, epi_f2)


def build():
    a = Asm()
    k_mod(a)
    k_ln(a, "ln1_kernel", KA["x"], 0, False, 0, 2048, WS["h"])
    k_qkv(a)
    k_attn(a)
    k_tail(a)
    return a


if __name__ == "__main__":
    a = build()
    out = sys.argv[1] if len(sys.argv) > 1 else f"cdna_kernels/{NAME}.s"
    open(out, "w").write(a.text())
    print("wrote", out, len(a.text()))
```

```python
import sys

NAME = "adaLN_cond__compressed_kv_cla__dense_activation_relu__prompt"
S, M, H, D, F = 2048, 512, 32, 128, 1792
MB = 1 << 20
KA = dict(x=0, ckv=8, wq=16, wuk=24, wuv=32, wo=40, bx=48, w1=56, w2=64, c=72, wmod=80, out=88, dbg=96, ws=104)
WS = dict(mod=0, h=1 * MB, q=16 * MB, k=32 * MB, vt=48 * MB, ctx=64 * MB, x1=80 * MB, h2=84 * MB, hid=88 * MB, part=96 * MB)
WS_SIZE = 268435456


class Asm:
    def __init__(self):
        self.lines = []
        self.launches = []
        self.descs = []
        self.lbl = 0

    def __call__(self, s):
        import re
        for ln in s.strip("\n").split("\n"):
            m = re.search(r"buffer_.*offset:(\d+)", ln)
            assert not (m and int(m.group(1)) > 4095), ln
            self.lines.append("    " + ln.strip())

    def label(self, name):
        self.lines.append(name + ":")

    def newlabel(self, p="L"):
        self.lbl += 1
        return f"{p}_{self.lbl}"

    def begin(self, kname):
        self.lines.append(f".globl {kname}\n.p2align 8\n.type {kname},@function\n{kname}:")

    def end(self, kname, vgpr, sgpr=100, accum=None):
        self("s_endpgm")
        vg = (vgpr + 3) // 4 * 4
        if accum is None:
            accum = vg
        self.descs.append(f""".amdhsa_kernel {kname}
  .amdhsa_next_free_vgpr {vgpr}
  .amdhsa_next_free_sgpr {sgpr}
  .amdhsa_accum_offset {accum}
  .amdhsa_group_segment_fixed_size 0
  .amdhsa_kernarg_size 112
  .amdhsa_user_sgpr_count 2
  .amdhsa_user_sgpr_kernarg_segment_ptr 1
  .amdhsa_system_sgpr_workgroup_id_x 1
.end_amdhsa_kernel""")

    def launch(self, kname, grid, block, lds):
        self.launches.append(f"; @launch kernel={kname} grid=({grid},1,1) block=({block},1,1) lds={lds}")

    def text(self):
        hdr = "\n".join(self.launches)
        return (hdr + '\n.amdgcn_target "amdgcn-amd-amdhsa--gfx950"\n.text\n' + "\n".join(self.lines)
                + '\n.section .rodata,"a"\n.p2align 6\n' + "\n.p2align 6\n".join(self.descs) + "\n")


def srd(a, sreg, slot, size, tmp=None):
    a(f"s_load_dwordx2 s[{sreg}:{sreg+1}], s[0:1], {slot}")
    a(f"s_mov_b32 s{sreg+2}, {size}")
    a(f"s_mov_b32 s{sreg+3}, 0x00020000")


def srd_off(a, sreg, off):
    if off:
        a(f"s_add_u32 s{sreg}, s{sreg}, {off}")
        a(f"s_addc_u32 s{sreg+1}, s{sreg+1}, 0")


def wave_sum(a, v, tmp, addr):
    for m in (1, 2, 4, 8, 16, 32):
        a(f"v_xor_b32 v{tmp}, {m*4}, v{addr}")
        a(f"ds_bpermute_b32 v{tmp}, v{tmp}, v{v}")
        a("s_waitcnt lgkmcnt(0)")
        a(f"v_add_f32 v{v}, v{v}, v{tmp}")


def k_mod(a):
    kn = "mod_kernel"
    a.begin(kn)
    NWG = 96
    a(f"s_cmp_ge_u32 s2, {NWG}")
    a("s_cbranch_scc1 mod_done")
    srd(a, 8, KA["c"], 1024)
    srd(a, 12, KA["wmod"], 512 * 3072 * 2)
    srd(a, 16, KA["ws"], 3072 * 4)
    a("""
    v_lshrrev_b32 v1, 6, v0          ; wave
    v_and_b32 v2, 63, v0             ; lane
    v_lshrrev_b32 v3, 4, v2
    v_and_b32 v4, 15, v2
    v_lshl_add_u32 v5, v1, 7, v3     ; k0 = wave*128 + rowsub
    v_lshlrev_b32 v6, 1, v5          ; c byte off
    s_lshl_b32 s3, s2, 6
    v_lshlrev_b32 v7, 2, v4          ; colpair*4
    v_add_u32 v7, s3, v7
    s_movk_i32 s4, 6144
    v_mul_lo_u32 v8, v5, s4
    v_add_u32 v7, v7, v8             ; w off
    v_mov_b32 v20, 0
    v_mov_b32 v21, 0
    s_waitcnt lgkmcnt(0)
    """)
    for i in range(32):
        a(f"buffer_load_ushort v{32+i}, v6, s[8:11], 0 offen offset:{i*8}")
    for i in range(32):
        a(f"s_mov_b32 s5, {i*4*6144}")
        a(f"buffer_load_dword v{64+i}, v7, s[12:15], s5 offen")
    for i in range(32):
        a(f"s_waitcnt vmcnt({32+31-i})")
        a(f"v_lshlrev_b32 v{32+i}, 16, v{32+i}")
        a(f"v_mul_f32 v22, 0xbfb8aa3b, v{32+i}")
        a("v_exp_f32 v22, v22")
        a("s_nop 0")
        a("v_add_f32 v22, 1.0, v22")
        a("v_rcp_f32 v22, v22")
        a("s_nop 0")
        a(f"v_mul_f32 v{32+i}, v{32+i}, v22")
    for i in range(32):
        a(f"s_waitcnt vmcnt({31-i})")
        a(f"v_lshlrev_b32 v22, 16, v{64+i}")
        a(f"v_and_b32 v23, 0xffff0000, v{64+i}")
        a(f"v_fmac_f32 v20, v22, v{32+i}")
        a(f"v_fmac_f32 v21, v23, v{32+i}")
    a("""
    v_lshlrev_b32 v9, 3, v0
    ds_write_b64 v9, v[20:21]
    s_waitcnt lgkmcnt(0)
    s_barrier
    v_cmp_gt_u32 vcc, 32, v0
    s_and_saveexec_b64 s[20:21], vcc
    s_cbranch_execz mod_done
    v_lshrrev_b32 v10, 1, v0
    v_and_b32 v11, 1, v0
    v_lshlrev_b32 v10, 3, v10
    v_lshl_add_u32 v10, v11, 2, v10   ; (t>>1)*8 + (t&1)*4
    v_mov_b32 v20, 0
    """)
    for i in range(16):
        a(f"ds_read_b32 v{32+i}, v10 offset:{i*128}")
    a("s_waitcnt lgkmcnt(0)")
    for i in range(16):
        a(f"v_add_f32 v20, v20, v{32+i}")
    a("""
    s_lshl_b32 s3, s2, 7
    v_lshlrev_b32 v12, 2, v0
    v_add_u32 v12, s3, v12
    buffer_store_dword v20, v12, s[16:19], 0 offen
    """)
    a.label("mod_done")
    a.end(kn, 96)
    a.launch(kn, NWG, 256, 2048)


def k_ln(a, kn, src_slot, src_off, src_f32, sh_off, sc_off, dst_off):
    a.begin(kn)
    NWG = S // 4
    done = a.newlabel("ln_done")
    a(f"s_cmp_ge_u32 s2, {NWG}")
    a(f"s_cbranch_scc1 {done}")
    esz = 4 if src_f32 else 2
    srd(a, 8, src_slot, S * M * esz)
    srd(a, 12, KA["ws"], 3072 * 4)
    srd(a, 16, KA["ws"], S * M * 2)
    a(f"""
    v_lshrrev_b32 v1, 6, v0
    v_and_b32 v2, 63, v0
    s_lshl_b32 s3, s2, 2
    v_add_u32 v1, s3, v1             ; row
    v_lshlrev_b32 v3, {9 + (2 if src_f32 else 1)}, v1
    v_lshl_add_u32 v3, v2, {5 if src_f32 else 4}, v3   ; src off
    v_lshlrev_b32 v4, 5, v2          ; mod off lane*32B
    v_lshlrev_b32 v5, 10, v1
    v_lshl_add_u32 v5, v2, 4, v5     ; dst off
    v_lshlrev_b32 v6, 2, v2          ; lane*4
    s_waitcnt lgkmcnt(0)
    """)
    srd_off(a, 8, src_off)
    srd_off(a, 16, dst_off)
    if src_f32:
        a("buffer_load_dwordx4 v[8:11], v3, s[8:11], 0 offen")
        a("buffer_load_dwordx4 v[12:15], v3, s[8:11], 0 offen offset:16")
    else:
        a("buffer_load_dwordx4 v[24:27], v3, s[8:11], 0 offen")
    a(f"s_mov_b32 s4, {sc_off}")
    a(f"s_mov_b32 s5, {sh_off}")
    a(f"buffer_load_dwordx4 v[32:35], v4, s[12:15], s4 offen")
    a(f"buffer_load_dwordx4 v[36:39], v4, s[12:15], s4 offen offset:16")
    a(f"buffer_load_dwordx4 v[40:43], v4, s[12:15], s5 offen")
    a(f"buffer_load_dwordx4 v[44:47], v4, s[12:15], s5 offen offset:16")
    a("s_waitcnt vmcnt(4)")
    if not src_f32:
        for i in range(4):
            a(f"v_lshlrev_b32 v{8+2*i}, 16, v{24+i}")
            a(f"v_and_b32 v{9+2*i}, 0xffff0000, v{24+i}")
    a("v_add_f32 v16, v8, v9")
    for i in range(2, 8):
        a(f"v_add_f32 v16, v16, v{8+i}")
    wave_sum(a, 16, 17, 6)
    a("v_mul_f32 v16, 0x3b000000, v16")
    for i in range(8):
        a(f"v_sub_f32 v{8+i}, v{8+i}, v16")
    a("v_mul_f32 v18, v8, v8")
    for i in range(1, 8):
        a(f"v_fmac_f32 v18, v{8+i}, v{8+i}")
    wave_sum(a, 18, 17, 6)
    a("""
    v_mov_b32 v19, 0x3727c5ac
    v_fmac_f32 v19, 0x3b000000, v18
    v_rsq_f32 v19, v19
    s_waitcnt vmcnt(0)
    """)
    for i in range(8):
        a(f"v_add_f32 v{32+i}, 1.0, v{32+i}")
        a(f"v_mul_f32 v{8+i}, v{8+i}, v19")
        a(f"v_fma_f32 v{8+i}, v{8+i}, v{32+i}, v{40+i}")
    for i in range(4):
        a(f"v_cvt_pk_bf16_f32 v{20+i}, v{8+2*i}, v{9+2*i}")
    a("buffer_store_dwordx4 v[20:23], v5, s[16:19], 0 offen")
    a.label(done)
    a.end(kn, 48)
    a.launch(kn, NWG, 256, 0)


PERM4 = [0, 2, 1, 3]


def gemm_prologue_common(a):
    a("""
    v_and_b32 v26, 63, v0
    v_and_b32 v24, 31, v0
    v_bfe_u32 v25, v0, 5, 1
    v_lshrrev_b32 v1, 6, v0
    s_nop 0
    v_readfirstlane_b32 s40, v1
    s_nop 3
    s_lshr_b32 s41, s40, 1
    s_and_b32 s42, s40, 1
    s_lshl_b32 s43, s40, 4
    s_lshl_b32 s40, s40, 12
    """)


def gemm_job(a, job):
    lda, ldb, nk = job["lda"], job["ldb"], job["nk"]
    a("""
    v_lshrrev_b32 v1, 3, v26         ; lane>>3
    v_lshrrev_b32 v2, 4, v26         ; lane>>4
    v_and_b32 v3, 7, v26
    s_lshl_b32 s4, s43, 1            ; w*32
    s_add_u32 s4, s4, s33            ; m0 + w*32
    v_add_u32 v1, s4, v1
    """)
    a(f"s_mov_b32 s5, {lda}")
    for i in range(4):
        a(f"v_add_u32 v4, {i*4}, v2")
        a("v_and_b32 v4, 7, v4")
        a("v_xor_b32 v4, v4, v3")
        a(f"v_add_u32 v5, {i*8}, v1")
        a("v_mul_lo_u32 v5, v5, s5")
        a(f"v_lshl_add_u32 v{10+i}, v4, 4, v5")
    a("""
    v_bfe_u32 v3, v26, 2, 2
    v_xor_b32 v3, v3, v2
    v_lshlrev_b32 v3, 6, v3
    v_and_b32 v4, 3, v26
    v_lshl_add_u32 v3, v4, 4, v3
    s_lshl_b32 s4, s34, 1
    v_add_u32 v3, s4, v3             ; + n0*2
    v_add_u32 v1, s43, v2            ; w*16 + lane>>4
    """)
    a(f"s_mov_b32 s5, {ldb}")
    for i in range(4):
        pi = PERM4[i] if job.get("permK") else i
        a(f"v_add_u32 v5, {pi*4}, v1")
        a("v_mul_lo_u32 v5, v5, s5")
        a(f"v_add_u32 v{14+i}, v5, v3")
    a("""
    s_lshl_b32 s4, s41, 6
    v_add_u32 v1, s4, v24            ; row
    v_bfe_u32 v2, v1, 1, 3           ; sw
    v_lshlrev_b32 v1, 7, v1
    """)
    for ks in range(4):
        a(f"v_add_u32 v3, {ks*2}, v25")
        a("v_xor_b32 v3, v3, v2")
        a(f"v_lshl_add_u32 v{18+ks}, v3, 4, v1")
    a("""
    v_bfe_u32 v1, v26, 2, 2          ; r
    v_lshrrev_b32 v2, 5, v26         ; G>>1
    v_lshlrev_b32 v2, 11, v2
    v_lshl_add_u32 v2, v1, 8, v2
    v_bfe_u32 v3, v26, 4, 1
    v_lshl_add_u32 v2, v3, 5, v2
    v_and_b32 v3, 3, v26
    v_lshl_add_u32 v2, v3, 3, v2
    v_add_u32 v2, 16384, v2
    s_lshl_b32 s4, s42, 1
    v_xor_b32 v3, s4, v1
    v_lshl_add_u32 v22, v3, 6, v2
    s_add_u32 s4, s4, 1
    v_xor_b32 v3, s4, v1
    v_lshl_add_u32 v23, v3, 6, v2
    """)
    for r in range(96, 160):
        a(f"v_mov_b32 v{r}, 0")
    a("s_mov_b32 s31, 0")
    a("s_mov_b32 s32, 0")

    def dma(buf):
        for i in range(4):
            a(f"s_add_u32 m0, s40, {buf*32768 + i*1024}")
            a("s_nop 0")
            a(f"buffer_load_dwordx4 v{10+i}, s[8:11], s31 offen lds")
        for i in range(4):
            a(f"s_add_u32 m0, s40, {buf*32768 + 16384 + i*1024}")
            a("s_nop 0")
            a(f"buffer_load_dwordx4 v{14+i}, s[12:15], s32 offen lds")
        a("s_add_u32 s31, s31, 128")
        a(f"s_add_u32 s32, s32, {64*ldb}")

    def reads(buf, ks):
        for t in range(2):
            a(f"ds_read_b128 v[{32+ks*8+t*4}:{35+ks*8+t*4}], v{18+ks} offset:{buf*32768 + t*4096}")
        for u in range(2):
            for hh in range(2):
                r = 64 + ks * 8 + u * 4 + hh * 2
                a(f"ds_read_b64_tr_b16 v[{r}:{r+1}], v{22+u} offset:{buf*32768 + ks*4096 + hh*1024}")

    def mfmas(ks):
        for t in range(2):
            for u in range(2):
                c = 96 + (t * 2 + u) * 16
                fa = f"v[{32+ks*8+t*4}:{35+ks*8+t*4}]"
                fb = f"v[{64+ks*8+u*4}:{67+ks*8+u*4}]"
                if job["swap"]:
                    fa, fb = fb, fa
                a(f"v_mfma_f32_32x32x16_bf16 v[{c}:{c+15}], {fa}, {fb}, v[{c}:{c+15}]")

    def step(buf, last):
        if not last:
            dma(1 - buf)
            a("s_waitcnt vmcnt(8)")
        else:
            a("s_waitcnt vmcnt(0)")
        a("s_barrier")
        reads(buf, 0)
        reads(buf, 1)
        a("s_waitcnt lgkmcnt(6)")
        mfmas(0)
        reads(buf, 2)
        a("s_waitcnt lgkmcnt(6)")
        mfmas(1)
        reads(buf, 3)
        a("s_waitcnt lgkmcnt(6)")
        mfmas(2)
        a("s_waitcnt lgkmcnt(0)")
        mfmas(3)
        if not last:
            a("s_barrier")

    dma(0)
    npair = nk // 2
    if npair > 1:
        lp = a.newlabel("gloop")
        a(f"s_mov_b32 s30, {npair-1}")
        a.label(lp)
        step(0, False)
        step(1, False)
        a("s_sub_u32 s30, s30, 1")
        a("s_cmp_lg_u32 s30, 0")
        a(f"s_cbranch_scc1 {lp}")
    step(0, False)
    step(1, True)
    a("s_nop 7")
    a("s_nop 7")


def epi_pack_store(a, relu, vaddr_t_stride, vaddr_u_stride, swap):
    for t in range(2):
        for u in range(2):
            c = 96 + (t * 2 + u) * 16
            for p in range(2):
                for j in range(4):
                    r0, r1 = c + p * 8 + j * 2, c + p * 8 + j * 2 + 1
                    if relu:
                        a(f"v_max_f32 v{r0}, 0, v{r0}")
                        a(f"v_max_f32 v{r1}, 0, v{r1}")
                    a(f"v_cvt_pk_bf16_f32 v{32+(t*4+u*2+p)*4+j}, v{r0}, v{r1}")
    for t in range(2):
        for u in range(2):
            off = t * vaddr_t_stride + u * vaddr_u_stride
            a(f"s_mov_b32 s4, {off}")
            for p in range(2):
                r = 32 + (t * 4 + u * 2 + p) * 4
                a(f"buffer_store_dwordx4 v[{r}:{r+3}], v28, s[16:19], s4 offen offset:{p*32}")


def k_qkv(a):
    kn = "qkv_kernel"
    a.begin(kn)
    NT = 16 * 32
    a(f"s_cmp_ge_u32 s2, {3*NT}")
    a("s_cbranch_scc1 qkv_done")
    gemm_prologue_common(a)
    a(f"""
    s_lshr_b32 s35, s2, 9            ; job 0..2
    s_and_b32 s36, s2, {NT-1}
    s_and_b32 s33, s36, 15
    s_lshl_b32 s33, s33, 7           ; m0
    s_lshr_b32 s37, s36, 4           ; head
    s_lshl_b32 s34, s37, 7           ; n0
    s_cmp_eq_u32 s35, 1
    s_cbranch_scc1 qkv_k
    s_cmp_eq_u32 s35, 2
    s_cbranch_scc1 qkv_v
    """)
    common = dict(lda=1024, ldb=8192, nk=8)
    for nm in ("q", "k", "v"):
        a.label("qkv_" + nm)
        if nm == "q":
            srd(a, 8, KA["ws"], S * M * 2)
        else:
            srd(a, 8, KA["ckv"], S * M * 2)
        srd(a, 12, KA[{"q": "wq", "k": "wuk", "v": "wuv"}[nm]], 512 * 4096 * 2)
        srd(a, 16, KA["ws"], 16 * MB)
        a("s_waitcnt lgkmcnt(0)")
        if nm == "q":
            srd_off(a, 8, WS["h"])
        srd_off(a, 16, WS[{"q": "q", "k": "k", "v": "vt"}[nm]])
        gemm_job(a, dict(common, swap=(nm != "v")))
        if nm != "v":
            a("""
            s_lshl_b32 s4, s37, 11
            s_add_u32 s4, s4, s33
            s_lshl_b32 s5, s41, 6
            s_add_u32 s4, s4, s5
            v_add_u32 v28, s4, v24
            v_lshlrev_b32 v28, 8, v28
            s_lshl_b32 s5, s42, 7
            v_add_u32 v28, s5, v28
            v_lshl_add_u32 v28, v25, 4, v28
            """)
            epi_pack_store(a, False, 32 * 256, 64, True)
        else:
            a("""
            s_lshl_b32 s5, s42, 6
            s_add_u32 s4, s34, s5
            v_add_u32 v28, s4, v24
            v_lshlrev_b32 v28, 12, v28
            s_lshl_b32 s5, s41, 6
            s_add_u32 s5, s5, s33
            s_lshl_b32 s5, s5, 1
            v_add_u32 v28, s5, v28
            v_lshl_add_u32 v28, v25, 4, v28
            """)
            epi_pack_store(a, False, 64, 32 * 4096, False)
        a("s_branch qkv_done")
    a.label("qkv_done")
    a.end(kn, 160)
    a.launch(kn, 3 * NT, 256, 65536)


def k_attn(a):
    kn = "attn_kernel"
    a.begin(kn)
    SC = 0x3e0293ee
    import struct, math
    SC = struct.unpack("<I", struct.pack("<f", 128 ** -0.5 * math.log2(math.e)))[0]
    a("s_cmp_ge_u32 s2, 256")
    a("s_cbranch_scc1 attn_done")
    srd(a, 8, KA["ws"], 16 * MB)
    srd(a, 12, KA["ws"], 16 * MB)
    srd(a, 16, KA["ws"], 16 * MB)
    srd(a, 20, KA["ws"], 16 * MB)
    a("""
    v_and_b32 v26, 63, v0
    v_and_b32 v24, 31, v0
    v_bfe_u32 v25, v0, 5, 1
    v_lshrrev_b32 v1, 6, v0
    s_nop 0
    v_readfirstlane_b32 s40, v1
    s_nop 3
    s_lshl_b32 s41, s40, 5          ; wave*32
    s_lshl_b32 s43, s40, 4          ; wave*16
    s_lshl_b32 s40, s40, 12
    s_lshr_b32 s33, s2, 3           ; head
    s_and_b32 s34, s2, 7
    s_waitcnt lgkmcnt(0)
    """)
    srd_off(a, 8, WS["k"])
    srd_off(a, 12, WS["vt"])
    srd_off(a, 16, WS["q"])
    srd_off(a, 20, WS["ctx"])
    a("""
    v_lshrrev_b32 v2, 4, v26
    v_and_b32 v3, 15, v26
    s_lshl_b32 s4, s33, 11
    s_add_u32 s4, s4, s43
    v_add_u32 v1, s4, v2
    """)
    for i in range(4):
        a(f"v_add_u32 v4, {i*4}, v2")
        a("v_xor_b32 v4, v4, v3")
        a(f"v_add_u32 v5, {i*4}, v1")
        a("v_lshlrev_b32 v5, 8, v5")
        a(f"v_lshl_add_u32 v{10+i}, v4, 4, v5")
    a("""
    v_lshrrev_b32 v1, 3, v26
    v_and_b32 v3, 7, v26
    s_lshl_b32 s4, s33, 7
    s_add_u32 s4, s4, s41
    v_add_u32 v1, s4, v1
    """)
    for i in range(4):
        a(f"v_add_u32 v4, {i*4}, v2")
        a("v_and_b32 v4, 7, v4")
        a("v_xor_b32 v4, v4, v3")
        a(f"v_add_u32 v5, {i*8}, v1")
        a("v_lshlrev_b32 v5, 12, v5")
        a(f"v_lshl_add_u32 v{14+i}, v4, 4, v5")
    a("v_and_b32 v2, 15, v24")
    a("v_lshlrev_b32 v1, 8, v24")
    for ds in range(8):
        a(f"v_add_u32 v3, {ds*2}, v25")
        a("v_xor_b32 v3, v3, v2")
        a(f"v_lshl_add_u32 v{32+ds}, v3, 4, v1")
    a("v_bfe_u32 v2, v24, 1, 3")
    a("v_lshlrev_b32 v1, 7, v24")
    a("v_add_u32 v1, 16384, v1")
    for ks in range(4):
        a(f"v_add_u32 v3, {ks*2}, v25")
        a("v_xor_b32 v3, v3, v2")
        a(f"v_lshl_add_u32 v{18+ks}, v3, 4, v1")
    a("""
    v_add_u32 v27, s41, v24
    v_lshlrev_b32 v1, 2, v25
    v_sub_u32 v27, v27, v1
    v_mov_b32 v29, 0xf149f2ca
    s_mov_b32 s35, 0
    """)
    QF, SS, PP, KF, VF, OO = 40, 72, 104, 120, 152, 184
    a.label("attn_outer")
    a("""
    s_sub_u32 s4, 15, s34
    s_cmp_eq_u32 s35, 0
    s_cselect_b32 s44, s4, s34       ; qb
    s_add_u32 s36, s44, 1
    s_lshl_b32 s36, s36, 1           ; ntiles
    s_lshl_b32 s4, s33, 11
    s_lshl_b32 s5, s44, 7
    s_add_u32 s4, s4, s5
    s_add_u32 s4, s4, s41
    v_add_u32 v1, s4, v24
    v_lshlrev_b32 v1, 8, v1
    v_lshl_add_u32 v1, v25, 4, v1
    """)
    for ds in range(8):
        a(f"buffer_load_dwordx4 v[{QF+ds*4}:{QF+ds*4+3}], v1, s[16:19], 0 offen offset:{ds*32}")
    for r in range(64):
        a(f"v_mov_b32 v{OO+r}, 0")
    a("""
    v_mov_b32 v30, 0xf149f2ca        ; m
    v_mov_b32 v31, 0                 ; l
    s_mov_b32 s37, 0
    s_mov_b32 s38, 0
    """)

    def dma(buf):
        for i in range(4):
            a(f"s_add_u32 m0, s40, {buf*32768 + i*1024}")
            a("s_nop 0")
            a(f"buffer_load_dwordx4 v{10+i}, s[8:11], s37 offen lds")
        for i in range(4):
            a(f"s_add_u32 m0, s40, {buf*32768 + 16384 + i*1024}")
            a("s_nop 0")
            a(f"buffer_load_dwordx4 v{14+i}, s[12:15], s38 offen lds")
        a("s_add_u32 s37, s37, 16384")
        a("s_add_u32 s38, s38, 128")

    def tile(buf, last, masked):
        if not last:
            dma(1 - buf)
            a("s_waitcnt vmcnt(8)")
        else:
            a("s_waitcnt vmcnt(0)")
        a("s_barrier")
        for half in range(2):
            for d4 in range(4):
                ds = half * 4 + d4
                for kt in range(2):
                    r = KF + (d4 * 2 + kt) * 4
                    a(f"ds_read_b128 v[{r}:{r+3}], v{32+ds} offset:{buf*32768 + kt*8192}")
            for d4 in range(4):
                ds = half * 4 + d4
                a(f"s_waitcnt lgkmcnt({6-2*d4})")
                for kt in range(2):
                    r = KF + (d4 * 2 + kt) * 4
                    c = SS + kt * 16
                    src = "0" if ds == 0 else f"v[{c}:{c+15}]"
                    a(f"v_mfma_f32_32x32x16_bf16 v[{c}:{c+15}], v[{r}:{r+3}], v[{QF+ds*4}:{QF+ds*4+3}], {src}")
        for ks in range(4):
            a(f"ds_read_b128 v[{VF+ks*4}:{VF+ks*4+3}], v{18+ks} offset:{buf*32768}")
        a("s_nop 7")
        a("s_nop 4")
        if masked is not None:
            for kt in range(2):
                for r in range(16):
                    cst = masked * 64 + kt * 32 + 8 * (r >> 2) + (r & 3)
                    a(f"v_cmp_le_i32 vcc, {cst}, v27")
                    a("s_nop 1")
                    a(f"v_cndmask_b32 v{SS+kt*16+r}, v29, v{SS+kt*16+r}, vcc")
        a(f"v_max3_f32 v1, v{SS}, v{SS+1}, v{SS+2}")
        for r in range(3, 31, 2):
            a(f"v_max3_f32 v1, v1, v{SS+r}, v{SS+r+1}")
        a(f"v_max_f32 v1, v1, v{SS+31}")
        a("v_mov_b32 v2, v1")
        a("s_nop 1")
        a("v_permlane32_swap_b32 v1, v2")
        a("s_nop 1")
        a("v_max_f32 v1, v1, v2")
        a(f"v_mul_f32 v1, 0x{SC:08x}, v1")
        a("v_max_f32 v1, v1, v30          ; m_new")
        a("v_sub_f32 v2, v30, v1")
        a("v_exp_f32 v2, v2               ; alpha")
        a("v_mov_b32 v30, v1")
        a(f"s_mov_b32 s4, 0x{SC:08x}")
        for r in range(32):
            a(f"v_fma_f32 v{SS+r}, v{SS+r}, s4, -v1")
        for r in range(32):
            a(f"v_exp_f32 v{SS+r}, v{SS+r}")
        a("v_mul_f32 v31, v31, v2")
        for r in range(64):
            a(f"v_mul_f32 v{OO+r}, v{OO+r}, v2")
        for r in range(32):
            a(f"v_add_f32 v31, v31, v{SS+r}")
        for r in range(16):
            a(f"v_cvt_pk_bf16_f32 v{PP+r}, v{SS+2*r}, v{SS+2*r+1}")
        for db in range(4):
            cur = VF + (db & 1) * 16
            nxt = VF + ((db + 1) & 1) * 16
            if db < 3:
                for ks in range(4):
                    a(f"ds_read_b128 v[{nxt+ks*4}:{nxt+ks*4+3}], v{18+ks} offset:{buf*32768 + (db+1)*4096}")
                a("s_waitcnt lgkmcnt(4)")
            else:
                a("s_waitcnt lgkmcnt(0)")
            c = OO + db * 16
            for ks in range(4):
                a(f"v_mfma_f32_32x32x16_bf16 v[{c}:{c+15}], v[{cur+ks*4}:{cur+ks*4+3}], v[{PP+ks*4}:{PP+ks*4+3}], v[{c}:{c+15}]")
        a("s_barrier")

    dma(0)
    skip = a.newlabel("attn_skip")
    lp = a.newlabel("attn_loop")
    a("s_sub_u32 s36, s36, 2")
    a("s_cmp_eq_u32 s36, 0")
    a(f"s_cbranch_scc1 {skip}")
    a.label(lp)
    tile(0, False, None)
    tile(1, False, None)
    a("s_sub_u32 s36, s36, 2")
    a("s_cmp_lg_u32 s36, 0")
    a(f"s_cbranch_scc1 {lp}")
    a.label(skip)
    tile(0, False, 0)
    tile(1, True, 1)
    a("""
    s_nop 7
    s_nop 4
    v_mov_b32 v2, v31
    s_nop 1
    v_permlane32_swap_b32 v31, v2
    s_nop 1
    v_add_f32 v31, v31, v2
    v_rcp_f32 v31, v31
    s_nop 0
    s_lshl_b32 s5, s44, 7
    s_add_u32 s5, s5, s41
    v_add_u32 v1, s5, v24
    v_lshlrev_b32 v1, 13, v1
    s_lshl_b32 s4, s33, 8
    v_add_u32 v1, s4, v1
    v_lshl_add_u32 v1, v25, 4, v1
    """)
    for r in range(64):
        a(f"v_mul_f32 v{OO+r}, v{OO+r}, v31")
    for r in range(32):
        a(f"v_cvt_pk_bf16_f32 v{KF+r}, v{OO+2*r}, v{OO+2*r+1}")
    for db in range(4):
        for p in range(2):
            r = KF + (db * 2 + p) * 4
            a(f"buffer_store_dwordx4 v[{r}:{r+3}], v1, s[20:23], 0 offen offset:{db*64+p*32}")
    a("""
    s_add_u32 s35, s35, 1
    s_cmp_lt_u32 s35, 2
    s_cbranch_scc1 attn_outer
    """)
    a.label("attn_done")
    a.end(kn, 248)
    a.launch(kn, 256, 256, 65536)


def epi_resid(a, res_f32, gate_off, out_f32):
    a("v_and_b32 v29, 511, v28")
    a("v_lshlrev_b32 v29, 2, v29")
    a(f"v_lshlrev_b32 v30, {2 if res_f32 else 1}, v28")
    a(f"v_lshlrev_b32 v31, {2 if out_f32 else 1}, v28")
    a(f"s_mov_b32 s4, {gate_off}")
    for u in range(2):
        for q in range(4):
            r = 32 + (u * 4 + q) * 4
            a(f"buffer_load_dwordx4 v[{r}:{r+3}], v29, s[24:27], s4 offen offset:{(u*32+q*8)*4}")
    for t in range(2):
        res = 64
        esz = 4 if res_f32 else 2
        a(f"s_mov_b32 s4, {t*32*512*esz}")
        for u in range(2):
            for q in range(4):
                if res_f32:
                    r = res + (u * 4 + q) * 4
                    a(f"buffer_load_dwordx4 v[{r}:{r+3}], v30, s[20:23], s4 offen offset:{(u*32+q*8)*4}")
                else:
                    r = res + (u * 4 + q) * 2
                    a(f"buffer_load_dwordx2 v[{r}:{r+1}], v30, s[20:23], s4 offen offset:{(u*32+q*8)*2}")
        a("s_waitcnt vmcnt(0)")
        a(f"s_mov_b32 s5, {t*32*512*(4 if out_f32 else 2)}")
        for u in range(2):
            c = 96 + (t * 2 + u) * 16
            for q in range(4):
                g = 32 + (u * 4 + q) * 4
                for j in range(4):
                    if res_f32:
                        rr = res + (u * 4 + q) * 4 + j
                        a(f"v_fma_f32 v{c+q*4+j}, v{c+q*4+j}, v{g+j}, v{rr}")
                    else:
                        rr = res + (u * 4 + q) * 2 + j // 2
                        if j % 2 == 0:
                            a(f"v_lshlrev_b32 v1, 16, v{rr}")
                        else:
                            a(f"v_and_b32 v1, 0xffff0000, v{rr}")
                        a(f"v_fma_f32 v{c+q*4+j}, v{c+q*4+j}, v{g+j}, v1")
                if out_f32:
                    a(f"buffer_store_dwordx4 v[{c+q*4}:{c+q*4+3}], v31, s[16:19], s5 offen offset:{(u*32+q*8)*4}")
                else:
                    a(f"v_cvt_pk_bf16_f32 v{c+q*4}, v{c+q*4}, v{c+q*4+1}")
                    a(f"v_cvt_pk_bf16_f32 v{c+q*4+1}, v{c+q*4+2}, v{c+q*4+3}")
                    a(f"buffer_store_dwordx2 v[{c+q*4}:{c+q*4+1}], v31, s[16:19], s5 offen offset:{(u*32+q*8)*2}")


def k_gemm_simple(a, kn, ntm, ntn, A, B, nk, epi):
    a.begin(kn)
    done = a.newlabel("g_done")
    a(f"s_cmp_ge_u32 s2, {ntm*ntn}")
    a(f"s_cbranch_scc1 {done}")
    gemm_prologue_common(a)
    a(f"""
    s_and_b32 s33, s2, {ntm-1}
    s_lshl_b32 s33, s33, 7           ; m0
    s_lshr_b32 s37, s2, {ntm.bit_length()-1}
    s_lshl_b32 s34, s37, 7           ; n0
    """)
    srd(a, 8, A[0], A[3])
    srd(a, 12, B[0], B[3])
    epi("srd")
    a("s_waitcnt lgkmcnt(0)")
    srd_off(a, 8, A[1])
    srd_off(a, 12, B[1])
    epi("off")
    gemm_job(a, dict(lda=A[2], ldb=B[2], nk=nk, swap=True, permK=B[4]))
    epi("go")
    a.label(done)
    a.end(kn, 160)
    a.launch(kn, ntm * ntn, 256, 65536)


def mn_index(a, ld):
    a(f"""
    s_lshl_b32 s5, s41, 6
    s_add_u32 s4, s33, s5
    v_add_u32 v28, s4, v24
    s_mov_b32 s5, {ld}
    v_mul_lo_u32 v28, v28, s5
    s_lshl_b32 s5, s42, 6
    s_add_u32 s5, s5, s34
    v_add_u32 v28, s5, v28
    """)


def k_tail(a):
    def epi_o(ph):
        if ph == "srd":
            srd(a, 16, KA["ws"], S * M * 4); srd(a, 20, KA["x"], S * M * 2); srd(a, 24, KA["ws"], 3072 * 4)
        elif ph == "off":
            srd_off(a, 16, WS["x1"])
        else:
            mn_index(a, 512)
            a("v_lshl_add_u32 v28, v25, 2, v28")
            epi_resid(a, False, 1024 * 4, True)
    k_gemm_simple(a, "oproj_kernel", 16, 4, (KA["ws"], WS["ctx"], 8192, 16 * MB), (KA["wo"], 0, 1024, 4096 * 1024, True), 64, epi_o)
    k_ln(a, "ln2_kernel", KA["ws"], WS["x1"], True, 1536 * 4, 2048 * 4, WS["h2"])

    def epi_f1(ph):
        if ph == "srd":
            srd(a, 16, KA["ws"], S * F * 2)
        elif ph == "off":
            srd_off(a, 16, WS["hid"])
        else:
            mn_index(a, F)
            a("v_lshl_add_u32 v28, v25, 3, v28")
            a("v_lshlrev_b32 v28, 1, v28")
            epi_pack_store(a, True, 32 * F * 2, 64, True)
    k_gemm_simple(a, "ffn1_kernel", 16, 14, (KA["ws"], WS["h2"], 1024, S * M * 2), (KA["w1"], 0, F * 2, 512 * F * 2, False), 8, epi_f1)

    def epi_f2(ph):
        if ph == "srd":
            srd(a, 16, KA["out"], S * M * 2); srd(a, 20, KA["ws"], S * M * 4); srd(a, 24, KA["ws"], 3072 * 4)
        elif ph == "off":
            srd_off(a, 20, WS["x1"])
        else:
            mn_index(a, 512)
            a("v_lshl_add_u32 v28, v25, 2, v28")
            epi_resid(a, True, 2560 * 4, False)
    k_gemm_simple(a, "ffn2_kernel", 16, 4, (KA["ws"], WS["hid"], F * 2, S * F * 2), (KA["w2"], 0, 1024, F * 1024, True), 28, epi_f2)


class G:
    def __init__(s, WMW, WNW, tm, tn, NST):
        s.WMW, s.WNW, s.tm, s.tn, s.NST = WMW, WNW, tm, tn, NST
        s.nw = WMW * WNW
        s.BM, s.BN = WMW * tm * 32, WNW * tn * 32
        s.RB = s.BN * 2
        s.abytes = s.BM * 128
        s.stage = s.abytes + 64 * s.RB
        s.na = s.BM // 8 // s.nw
        s.nb = s.BN // 8 // s.nw
        s.lds = s.stage * NST
        s.vA = 32
        s.vB = s.vA + s.na
        s.vRA = s.vB + s.nb
        s.nsets = (s.lds + 65535) // 65536
        s.vRB = s.vRA + 4 * s.nsets
        s.vF = (s.vRB + tn * s.nsets + 3) // 4 * 4
        s.fper = (tm + tn) * 4
        s.nfs = 4 if tm * tn <= 4 else 2
        s.vC = s.vF + max(s.nfs * s.fper, 64)
        s.vEnd = s.vC + tm * tn * 16


def g_prologue(a, g):
    a(f"""
    v_and_b32 v26, 63, v0
    v_and_b32 v24, 31, v0
    v_bfe_u32 v25, v0, 5, 1
    v_lshrrev_b32 v1, 6, v0
    s_nop 0
    v_readfirstlane_b32 s40, v1
    s_nop 3
    s_lshr_b32 s41, s40, {g.WNW.bit_length()-1}
    s_and_b32 s42, s40, {g.WNW-1}
    """)


def g_job(a, g, lda, ldb, nk, swap, permK):
    tm, tn, NST, RB = g.tm, g.tn, g.NST, g.RB
    lrb = RB.bit_length() - 1
    a(f"""
    v_lshrrev_b32 v1, 3, v26
    v_lshrrev_b32 v2, 4, v26
    v_and_b32 v3, 7, v26
    s_mul_i32 s4, s40, {g.na}
    s_mov_b32 s5, {lda}
    """)
    for i in range(g.na):
        a(f"""
        s_add_u32 s6, s4, {i}
        s_lshl_b32 s7, s6, 2
        v_add_u32 v4, s7, v2
        v_and_b32 v4, 7, v4
        v_xor_b32 v4, v4, v3
        s_lshl_b32 s7, s6, 3
        s_add_u32 s7, s7, s33
        v_add_u32 v5, s7, v1
        v_mul_lo_u32 v5, v5, s5
        v_lshl_add_u32 v{g.vA+i}, v4, 4, v5
        """)
    a(f"""
    s_mul_i32 s4, s40, {g.nb}
    s_mov_b32 s5, {ldb}
    s_lshl_b32 s44, s34, 1
    v_lshlrev_b32 v1, 4, v26
    """)
    for i in range(g.nb):
        a(f"""
        s_add_u32 s6, s4, {i}
        s_lshl_b32 s6, s6, 10
        v_add_u32 v2, s6, v1
        v_lshrrev_b32 v3, {lrb}, v2      ; k
        v_and_b32 v4, {RB-1}, v2         ; within
        """)
        if RB == 128:
            a("v_bfe_u32 v5, v3, 1, 1")
        else:
            a("v_and_b32 v5, 3, v3")
        a("v_lshlrev_b32 v5, 6, v5")
        a("v_xor_b32 v4, v4, v5")
        if permK:
            a("""
            v_and_b32 v5, 4, v3
            v_and_b32 v6, 8, v3
            v_and_b32 v3, 0xfffffff3, v3
            v_lshl_add_u32 v3, v5, 1, v3
            v_lshrrev_b32 v6, 1, v6
            v_add_u32 v3, v3, v6
            """)
        a("v_mul_lo_u32 v3, v3, s5")
        a("v_add_u32 v3, v3, v4")
        a(f"v_add_u32 v{g.vB+i}, s44, v3")
    a(f"""
    s_mul_i32 s4, s41, {tm*32}
    v_add_u32 v1, s4, v24
    v_bfe_u32 v2, v1, 1, 3
    v_lshlrev_b32 v1, 7, v1
    """)
    for ks in range(4):
        a(f"v_add_u32 v3, {ks*2}, v25")
        a("v_xor_b32 v3, v3, v2")
        a(f"v_lshl_add_u32 v{g.vRA+ks}, v3, 4, v1")
    a(f"""
    v_bfe_u32 v1, v26, 2, 2          ; r
    v_lshrrev_b32 v2, 5, v26
    v_lshlrev_b32 v2, {lrb+3}, v2
    v_lshl_add_u32 v2, v1, {lrb}, v2
    v_bfe_u32 v3, v26, 4, 1
    v_lshl_add_u32 v2, v3, 5, v2
    v_and_b32 v3, 3, v26
    v_lshl_add_u32 v2, v3, 3, v2
    v_add_u32 v2, {g.abytes}, v2
    s_mul_i32 s4, s42, {tn}
    """)
    if RB == 128:
        a("v_lshrrev_b32 v1, 1, v1")
    for u in range(tn):
        a(f"s_add_u32 s5, s4, {u}")
        a("v_xor_b32 v3, s5, v1")
        a(f"v_lshl_add_u32 v{g.vRB+u}, v3, 6, v2")
    for st in range(1, g.nsets):
        for ks in range(4):
            a(f"v_add_u32 v{g.vRA+4*st+ks}, {65536*st}, v{g.vRA+ks}")
        for u in range(tn):
            a(f"v_add_u32 v{g.vRB+tn*st+u}, {65536*st}, v{g.vRB+u}")
    for r in range(g.vC, g.vEnd):
        a(f"v_mov_b32 v{r}, 0")
    a(f"s_lshl_b32 s45, s40, 10")
    a(f"s_mul_i32 s46, s45, {g.nb}")
    a(f"s_mul_i32 s45, s45, {g.na}")
    nper = g.na + g.nb
    a(f"""
    s_mov_b32 s53, s31
    s_mov_b32 s54, s32
    s_lshr_b32 s52, s2, 3
    s_and_b32 s52, s52, 31
    """)
    for _ in range(31 // nk + 1):
        a(f"s_sub_u32 s4, s52, {nk}")
        a(f"s_cmp_ge_u32 s52, {nk}")
        a("s_cselect_b32 s52, s4, s52")

    def dma(stg):
        base = stg * g.stage
        a("s_lshl_b32 s31, s52, 7")
        a("s_add_u32 s31, s31, s53")
        a(f"s_mul_i32 s32, s52, {64*ldb}")
        a("s_add_u32 s32, s32, s54")
        a("s_add_u32 s52, s52, 1")
        a(f"s_cmp_eq_u32 s52, {nk}")
        a("s_cselect_b32 s52, 0, s52")
        for i in range(g.na):
            a(f"s_add_u32 m0, s45, {base + i*1024}")
            a("s_nop 0")
            a(f"buffer_load_dwordx4 v{g.vA+i}, s[8:11], s31 offen lds")
        for i in range(g.nb):
            a(f"s_add_u32 m0, s46, {base + g.abytes + i*1024}")
            a("s_nop 0")
            a(f"buffer_load_dwordx4 v{g.vB+i}, s[12:15], s32 offen lds")

    import os
    GA = os.environ.get("GABL", "")

    def rd(reg_base, nregs, idx, off, op, dst):
        if "nolds" in GA or ("notr" in GA and "tr" in op) or ("nob128" in GA and "128" in op):
            return
        st, o = off // 65536, off % 65536
        a(f"{op} {dst}, v{reg_base + nregs*st + idx} offset:{o}")

    def reads(stg, ks):
        base = stg * g.stage
        f = g.vF + (ks % g.nfs) * g.fper
        for t in range(tm):
            rd(g.vRA, 4, ks, base + t * 4096, "ds_read_b128", f"v[{f+t*4}:{f+t*4+3}]")
        for u in range(tn):
            for hh in range(2):
                r = f + tm * 4 + u * 4 + hh * 2
                rd(g.vRB, tn, u, base + ks * 16 * RB + hh * 4 * RB, "ds_read_b64_tr_b16", f"v[{r}:{r+1}]")

    def mfmas(ks):
        f = g.vF + (ks % g.nfs) * g.fper
        for t in range(tm):
            for u in range(tn):
                c = g.vC + (t * tn + u) * 16
                fa = f"v[{f+t*4}:{f+t*4+3}]"
                fb = f"v[{f+tm*4+u*4}:{f+tm*4+u*4+3}]"
                if swap:
                    fa, fb = fb, fa
                a(f"v_mfma_f32_32x32x16_bf16 v[{c}:{c+15}], {fa}, {fb}, v[{c}:{c+15}]")

    nrd = tm + 2 * tn

    def step(stg, issue, inflight_after):
        a(f"s_waitcnt vmcnt({inflight_after*nper})")
        a("s_barrier")
        reads(stg, 0)
        reads(stg, 1)
        if issue and "nodma" not in GA:
            dma((stg + NST - 1) % NST)
        a(f"s_waitcnt lgkmcnt({nrd})")
        mfmas(0)
        reads(stg, 2)
        a(f"s_waitcnt lgkmcnt({nrd})")
        mfmas(1)
        reads(stg, 3)
        a(f"s_waitcnt lgkmcnt({nrd})")
        mfmas(2)
        a("s_waitcnt lgkmcnt(0)")
        mfmas(3)

    for s_ in range(NST - 1):
        dma(s_)
    n_main = nk - (NST - 1)
    loops = n_main // NST
    if loops > 0:
        lp = a.newlabel("gloop")
        a(f"s_mov_b32 s30, {loops}")
        a.label(lp)
        for j in range(NST):
            step(j, True, NST - 2)
        a("s_sub_u32 s30, s30, 1")
        a("s_cmp_lg_u32 s30, 0")
        a(f"s_cbranch_scc1 {lp}")
    k = loops * NST
    while k < nk:
        issue = k + NST - 1 < nk
        infl = min(NST - 2, nk - 1 - k)
        step(k % NST, issue, infl)
        k += 1
    a("s_nop 7")
    a("s_nop 7")


def g_epi_pack(a, g, relu, t_stride, u_stride):
    tm, tn = g.tm, g.tn
    for t in range(tm):
        for u in range(tn):
            c = g.vC + (t * tn + u) * 16
            for p in range(2):
                for j in range(4):
                    r0, r1 = c + p * 8 + j * 2, c + p * 8 + j * 2 + 1
                    if relu:
                        a(f"v_max_f32 v{r0}, 0, v{r0}")
                        a(f"v_max_f32 v{r1}, 0, v{r1}")
                    a(f"v_cvt_pk_bf16_f32 v{c+p*4+j}, v{r0}, v{r1}")
            a(f"s_mov_b32 s4, {t*t_stride+u*u_stride}")
            for p in range(2):
                r = c + p * 4
                import os
                if "nost" not in os.environ.get("ABL",""): a(f"buffer_store_dwordx4 v[{r}:{r+3}], v28, s[16:19], s4 offen offset:{p*32}")


def g_epi_resid(a, g, res_f32, gate_off, out_f32):
    tm, tn = g.tm, g.tn
    F0 = g.vF
    a("v_and_b32 v29, 511, v28")
    a("v_lshlrev_b32 v29, 2, v29")
    a(f"v_lshlrev_b32 v30, {2 if res_f32 else 1}, v28")
    a(f"v_lshlrev_b32 v31, {2 if out_f32 else 1}, v28")
    a(f"s_mov_b32 s4, {gate_off}")
    assert tn * 16 * 2 <= 4 * g.fper or True
    for u in range(tn):
        for q in range(4):
            r = F0 + (u * 4 + q) * 4
            a(f"buffer_load_dwordx4 v[{r}:{r+3}], v29, s[24:27], s4 offen offset:{(u*32+q*8)*4}")
    res = F0 + tn * 16
    for t in range(tm):
        esz = 4 if res_f32 else 2
        a(f"s_mov_b32 s4, {t*32*512*esz}")
        for u in range(tn):
            for q in range(4):
                if res_f32:
                    r = res + (u * 4 + q) * 4
                    a(f"buffer_load_dwordx4 v[{r}:{r+3}], v30, s[20:23], s4 offen offset:{(u*32+q*8)*4}")
                else:
                    r = res + (u * 4 + q) * 2
                    a(f"buffer_load_dwordx2 v[{r}:{r+1}], v30, s[20:23], s4 offen offset:{(u*32+q*8)*2}")
        a("s_waitcnt vmcnt(0)")
        a(f"s_mov_b32 s5, {t*32*512*(4 if out_f32 else 2)}")
        for u in range(tn):
            c = g.vC + (t * tn + u) * 16
            for q in range(4):
                gg = F0 + (u * 4 + q) * 4
                for j in range(4):
                    if res_f32:
                        rr = res + (u * 4 + q) * 4 + j
                        a(f"v_fma_f32 v{c+q*4+j}, v{c+q*4+j}, v{gg+j}, v{rr}")
                    else:
                        rr = res + (u * 4 + q) * 2 + j // 2
                        if j % 2 == 0:
                            a(f"v_lshlrev_b32 v1, 16, v{rr}")
                        else:
                            a(f"v_and_b32 v1, 0xffff0000, v{rr}")
                        a(f"v_fma_f32 v{c+q*4+j}, v{c+q*4+j}, v{gg+j}, v1")
                if out_f32:
                    a(f"buffer_store_dwordx4 v[{c+q*4}:{c+q*4+3}], v31, s[16:19], s5 offen offset:{(u*32+q*8)*4}")
                else:
                    a(f"v_cvt_pk_bf16_f32 v{c+q*4}, v{c+q*4}, v{c+q*4+1}")
                    a(f"v_cvt_pk_bf16_f32 v{c+q*4+1}, v{c+q*4+2}, v{c+q*4+3}")
                    a(f"buffer_store_dwordx2 v[{c+q*4}:{c+q*4+1}], v31, s[16:19], s5 offen offset:{(u*32+q*8)*2}")


def g_mn(a, g, ld):
    a(f"""
    s_mul_i32 s5, s41, {g.tm*32}
    s_add_u32 s4, s33, s5
    v_add_u32 v28, s4, v24
    s_mov_b32 s5, {ld}
    v_mul_lo_u32 v28, v28, s5
    s_mul_i32 s5, s42, {g.tn*32}
    s_add_u32 s5, s5, s34
    v_add_u32 v28, s5, v28
    """)


def g_kernel(a, kn, g, Mrows, Ncols, A, B, nk, epi):
    ntm, ntn = Mrows // g.BM, Ncols // g.BN
    a.begin(kn)
    done = a.newlabel("g_done")
    a(f"s_cmp_ge_u32 s2, {ntm*ntn}")
    a(f"s_cbranch_scc1 {done}")
    g_prologue(a, g)
    per = ntm // 8
    lp = per.bit_length() - 1
    a(f"""
    s_and_b32 s33, s2, 7
    s_lshl_b32 s33, s33, {lp}
    s_lshr_b32 s4, s2, 3
    s_and_b32 s4, s4, {per-1}
    s_add_u32 s33, s33, s4
    s_mul_i32 s33, s33, {g.BM}
    s_lshr_b32 s37, s2, {ntm.bit_length()-1}
    s_mul_i32 s34, s37, {g.BN}
    s_mov_b32 s31, 0
    s_mov_b32 s32, 0
    """)
    srd(a, 8, A[0], A[3])
    srd(a, 12, B[0], B[3])
    epi("srd")
    a("s_waitcnt lgkmcnt(0)")
    srd_off(a, 8, A[1])
    srd_off(a, 12, B[1])
    epi("off")
    g_job(a, g, A[2], B[2], nk, True, B[4])
    epi("go")
    a.label(done)
    a.end(kn, g.vEnd)
    a.launch(kn, ntm * ntn, g.nw * 64, g.lds)


def k_tail2(a):
    gs = G(2, 2, 1, 1, 9)

    def epi_o(ph):
        if ph == "srd":
            srd(a, 16, KA["ws"], S * M * 4); srd(a, 20, KA["x"], S * M * 2); srd(a, 24, KA["ws"], 3072 * 4)
        elif ph == "off":
            srd_off(a, 16, WS["x1"])
        else:
            g_mn(a, gs, 512)
            a("v_lshl_add_u32 v28, v25, 2, v28")
            g_epi_resid(a, gs, False, 1024 * 4, True)
    k_oproj_split(a)
    k_ln2(a)
    g1 = G(2, 2, 2, 2, 5)

    def epi_f1(ph):
        if ph == "srd":
            srd(a, 16, KA["ws"], S * F * 2)
        elif ph == "off":
            srd_off(a, 16, WS["hid"])
        else:
            g_mn(a, g1, F)
            a("v_lshl_add_u32 v28, v25, 3, v28")
            a("v_lshlrev_b32 v28, 1, v28")
            g_epi_pack(a, g1, True, 32 * F * 2, 64)
    g_kernel(a, "ffn1_kernel", g1, S, F, (KA["ws"], WS["h2"], 1024, S * M * 2), (KA["w1"], 0, F * 2, 512 * F * 2, False), 8, epi_f1)

    def epi_f2(ph):
        if ph == "srd":
            srd(a, 16, KA["out"], S * M * 2); srd(a, 20, KA["ws"], S * M * 4); srd(a, 24, KA["ws"], 3072 * 4)
        elif ph == "off":
            srd_off(a, 20, WS["x1"])
        else:
            g_mn(a, gs, 512)
            a("v_lshl_add_u32 v28, v25, 2, v28")
            g_epi_resid(a, gs, True, 2560 * 4, False)
    g_kernel(a, "ffn2_kernel", gs, S, 512, (KA["ws"], WS["hid"], F * 2, S * F * 2), (KA["w2"], 0, 1024, F * 1024, True), 28, epi_f2)


def k_attn2(a):
    import struct, math, os
    ABL = os.environ.get("ABL", "")
    kn = "attn_kernel"
    a.begin(kn)
    SC = struct.unpack("<I", struct.pack("<f", 128 ** -0.5 * math.log2(math.e)))[0]
    a("s_cmp_ge_u32 s2, 256")
    a("s_cbranch_scc1 attn_done")
    for r in (8, 12, 16, 20):
        srd(a, r, KA["ws"], 16 * MB)
    a("""
    v_and_b32 v26, 63, v0
    v_and_b32 v24, 31, v0
    v_bfe_u32 v25, v0, 5, 1
    v_lshrrev_b32 v1, 6, v0
    s_nop 0
    v_readfirstlane_b32 s40, v1
    s_nop 3
    s_lshr_b32 s48, s40, 2          ; kh
    s_and_b32 s40, s40, 3           ; w4
    s_lshl_b32 s41, s40, 5          ; w4*32
    s_lshl_b32 s43, s40, 4          ; w4*16
    s_lshl_b32 s49, s48, 16
    s_lshl_b32 s40, s40, 12
    s_add_u32 s40, s40, s49
    s_and_b32 s33, s2, 7
    s_lshl_b32 s33, s33, 2
    s_lshr_b32 s34, s2, 3
    s_and_b32 s4, s34, 3
    s_add_u32 s33, s33, s4
    s_lshr_b32 s34, s34, 2
    s_waitcnt lgkmcnt(0)
    """)
    srd_off(a, 8, WS["k"])
    srd_off(a, 12, WS["vt"])
    srd_off(a, 16, WS["q"])
    srd_off(a, 20, WS["ctx"])
    a("""
    v_lshrrev_b32 v2, 4, v26
    v_and_b32 v3, 15, v26
    s_lshl_b32 s4, s33, 11
    s_add_u32 s4, s4, s43
    v_add_u32 v1, s4, v2
    """)
    for i in range(4):
        a(f"v_add_u32 v4, {i*4}, v2")
        a("v_xor_b32 v4, v4, v3")
        a(f"v_add_u32 v5, {i*4}, v1")
        a("v_lshlrev_b32 v5, 8, v5")
        a(f"v_lshl_add_u32 v{10+i}, v4, 4, v5")
    a("""
    v_lshrrev_b32 v1, 3, v26
    v_and_b32 v3, 7, v26
    s_lshl_b32 s4, s33, 7
    s_add_u32 s4, s4, s41
    v_add_u32 v1, s4, v1
    """)
    for i in range(4):
        a(f"v_add_u32 v4, {i*4}, v2")
        a("v_and_b32 v4, 7, v4")
        a("v_xor_b32 v4, v4, v3")
        a(f"v_add_u32 v5, {i*8}, v1")
        a("v_lshlrev_b32 v5, 12, v5")
        a(f"v_lshl_add_u32 v{14+i}, v4, 4, v5")
    a("v_and_b32 v2, 15, v24")
    a("v_lshlrev_b32 v1, 8, v24")
    a("v_add_u32 v1, s49, v1")
    for ds in range(8):
        a(f"v_add_u32 v3, {ds*2}, v25")
        a("v_xor_b32 v3, v3, v2")
        a(f"v_lshl_add_u32 v{32+ds}, v3, 4, v1")
    a("v_bfe_u32 v2, v24, 1, 3")
    a("v_lshlrev_b32 v1, 7, v24")
    a("v_add_u32 v1, 16384, v1")
    a("v_add_u32 v1, s49, v1")
    for ks in range(4):
        a(f"v_add_u32 v3, {ks*2}, v25")
        a("v_xor_b32 v3, v3, v2")
        a(f"v_lshl_add_u32 v{18+ks}, v3, 4, v1")
    a("""
    v_add_u32 v27, s41, v24
    v_lshlrev_b32 v1, 2, v25
    v_sub_u32 v27, v27, v1
    s_lshl_b32 s4, s48, 6
    v_subrev_u32 v27, s4, v27        ; - kh*64
    v_mov_b32 v29, 0xf149f2ca
    s_mov_b32 s35, 0
    """)
    QF, SS, PP, KF, VF, OO = 40, 72, 104, 120, 152, 184
    a.label("attn_outer")
    a("""
    s_sub_u32 s4, 15, s34
    s_cmp_eq_u32 s35, 0
    s_cselect_b32 s44, s4, s34       ; qb
    s_mov_b32 s36, s44
    s_lshl_b32 s4, s33, 11
    s_lshl_b32 s5, s44, 7
    s_add_u32 s4, s4, s5
    s_add_u32 s4, s4, s41
    v_add_u32 v1, s4, v24
    v_lshlrev_b32 v1, 8, v1
    v_lshl_add_u32 v1, v25, 4, v1
    """)
    for ds in range(8):
        a(f"buffer_load_dwordx4 v[{QF+ds*4}:{QF+ds*4+3}], v1, s[16:19], 0 offen offset:{ds*32}")
    for r in range(64):
        a(f"v_mov_b32 v{OO+r}, 0")
    a("""
    v_mov_b32 v30, 0xf149f2ca
    v_mov_b32 v31, 0
    s_lshl_b32 s37, s48, 14          ; K soffset = kh*16384
    s_lshl_b32 s38, s48, 7           ; V soffset = kh*128
    s_mov_b32 s47, s40
    """)

    def dma():
        for i in range(4):
            a(f"s_add_u32 m0, s47, {i*1024}")
            a("s_nop 0")
            a(f"buffer_load_dwordx4 v{10+i}, s[8:11], s37 offen lds")
        for i in range(4):
            a(f"s_add_u32 m0, s47, {16384 + i*1024}")
            a("s_nop 0")
            a(f"buffer_load_dwordx4 v{14+i}, s[12:15], s38 offen lds")
        a("s_add_u32 s37, s37, 32768")
        a("s_add_u32 s38, s38, 256")
        a("s_xor_b32 s47, s47, 32768")

    def tile(last, masked):
        a("s_waitcnt vmcnt(0)")
        if "nobar" not in ABL: a("s_barrier")
        if not last and "nodma" not in ABL:
            dma()
        for half in range(2):
            for d4 in range(4):
                ds = half * 4 + d4
                for kt in range(2):
                    r = KF + (d4 * 2 + kt) * 4
                    if "nolds" not in ABL: a(f"ds_read_b128 v[{r}:{r+3}], v{32+ds} offset:{kt*8192}")
            for d4 in range(4):
                ds = half * 4 + d4
                a(f"s_waitcnt lgkmcnt({6-2*d4})")
                for kt in range(2):
                    r = KF + (d4 * 2 + kt) * 4
                    c = SS + kt * 16
                    src = "0" if ds == 0 else f"v[{c}:{c+15}]"
                    if "noqk" not in ABL: a(f"v_mfma_f32_32x32x16_bf16 v[{c}:{c+15}], v[{r}:{r+3}], v[{QF+ds*4}:{QF+ds*4+3}], {src}")
        for ks in range(4):
            if "nolds" not in ABL: a(f"ds_read_b128 v[{VF+ks*4}:{VF+ks*4+3}], v{18+ks}")
        a("s_nop 7")
        a("s_nop 4")
        if masked:
            for kt in range(2):
                for r in range(16):
                    cst = kt * 32 + 8 * (r >> 2) + (r & 3)
                    a(f"v_cmp_le_i32 vcc, {cst}, v27")
                    a("s_nop 1")
                    a(f"v_cndmask_b32 v{SS+kt*16+r}, v29, v{SS+kt*16+r}, vcc")
        a(f"v_max3_f32 v1, v{SS}, v{SS+1}, v{SS+2}")
        for r in range(3, 31, 2):
            a(f"v_max3_f32 v1, v1, v{SS+r}, v{SS+r+1}")
        a(f"v_max_f32 v1, v1, v{SS+31}")
        a("v_mov_b32 v2, v1")
        a("s_nop 1")
        a("v_permlane32_swap_b32 v1, v2")
        a("s_nop 1")
        a("v_max_f32 v1, v1, v2")
        a(f"v_mul_f32 v1, 0x{SC:08x}, v1")
        a("v_max_f32 v1, v1, v30")
        a("v_sub_f32 v2, v30, v1")
        a("v_exp_f32 v2, v2")
        a("v_mov_b32 v30, v1")
        a(f"s_mov_b32 s4, 0x{SC:08x}")
        for r in range(32 if "novalu" not in ABL else 0):
            a(f"v_fma_f32 v{SS+r}, v{SS+r}, s4, -v1")
        for r in range(32 if "novalu" not in ABL else 0):
            a(f"v_exp_f32 v{SS+r}, v{SS+r}")
        a("v_mul_f32 v31, v31, v2")
        for r in range(64 if "novalu" not in ABL else 0):
            a(f"v_mul_f32 v{OO+r}, v{OO+r}, v2")
        for r in range(32 if "novalu" not in ABL else 0):
            a(f"v_add_f32 v31, v31, v{SS+r}")
        for r in range(16):
            a(f"v_cvt_pk_bf16_f32 v{PP+r}, v{SS+2*r}, v{SS+2*r+1}")
        for db in range(4):
            cur = VF + (db & 1) * 16
            nxt = VF + ((db + 1) & 1) * 16
            if db < 3:
                for ks in range(4):
                    if "nolds" not in ABL: a(f"ds_read_b128 v[{nxt+ks*4}:{nxt+ks*4+3}], v{18+ks} offset:{(db+1)*4096}")
                a("s_waitcnt lgkmcnt(4)")
            else:
                a("s_waitcnt lgkmcnt(0)")
            c = OO + db * 16
            for ks in range(4):
                if "nopv" not in ABL: a(f"v_mfma_f32_32x32x16_bf16 v[{c}:{c+15}], v[{cur+ks*4}:{cur+ks*4+3}], v[{PP+ks*4}:{PP+ks*4+3}], v[{c}:{c+15}]")
        for r in list(range(32, 40)) + list(range(18, 22)):
            a(f"v_xor_b32 v{r}, 32768, v{r}")

    dma()
    skip = a.newlabel("attn_skip")
    lp = a.newlabel("attn_loop")
    a("s_cmp_eq_u32 s36, 0")
    a(f"s_cbranch_scc1 {skip}")
    a.label(lp)
    tile(False, False)
    a("s_sub_u32 s36, s36, 1")
    a("s_cmp_lg_u32 s36, 0")
    a(f"s_cbranch_scc1 {lp}")
    a.label(skip)
    tile(True, True)
    fix = a.newlabel("attn_fix")
    a("s_and_b32 s4, s44, 1")
    a("s_cmp_eq_u32 s4, 1")
    a(f"s_cbranch_scc1 {fix}")
    for r in list(range(32, 40)) + list(range(18, 22)):
        a(f"v_xor_b32 v{r}, 32768, v{r}")
    a.label(fix)
    a("""
    s_nop 7
    s_nop 4
    s_barrier
    s_lshr_b32 s4, s41, 5
    s_mul_i32 s4, s4, 17408
    v_lshlrev_b32 v1, 4, v26
    v_add_u32 v1, s4, v1
    s_cmp_eq_u32 s48, 0
    s_cbranch_scc1 attn_g0
    """)
    for q in range(16):
        a(f"ds_write_b128 v1, v[{OO+q*4}:{OO+q*4+3}] offset:{q*1024}")
    a("ds_write_b64 v1, v[30:31] offset:16384")
    a("s_waitcnt lgkmcnt(0)")
    a("s_barrier")
    a("s_barrier")
    a("s_branch attn_next")
    a.label("attn_g0")
    a("s_barrier")
    for q in range(16):
        a(f"ds_read_b128 v[{KF+q*4}:{KF+q*4+3}], v1 offset:{q*1024}")
    a("ds_read_b64 v[2:3], v1 offset:16384")
    a("""
    s_waitcnt lgkmcnt(0)
    s_barrier
    v_max_f32 v4, v30, v2
    v_sub_f32 v5, v30, v4
    v_sub_f32 v6, v2, v4
    v_exp_f32 v5, v5
    v_exp_f32 v6, v6
    s_nop 0
    v_mul_f32 v31, v31, v5
    v_fmac_f32 v31, v3, v6
    """)
    for r in range(64):
        a(f"v_mul_f32 v{OO+r}, v{OO+r}, v5")
        a(f"v_fmac_f32 v{OO+r}, v{KF+r}, v6")
    a("""
    v_mov_b32 v2, v31
    s_nop 1
    v_permlane32_swap_b32 v31, v2
    s_nop 1
    v_add_f32 v31, v31, v2
    v_rcp_f32 v31, v31
    s_nop 0
    s_lshl_b32 s5, s44, 7
    s_add_u32 s5, s5, s41
    v_add_u32 v1, s5, v24
    v_lshlrev_b32 v1, 13, v1
    s_lshl_b32 s4, s33, 8
    v_add_u32 v1, s4, v1
    v_lshl_add_u32 v1, v25, 4, v1
    """)
    for r in range(64):
        a(f"v_mul_f32 v{OO+r}, v{OO+r}, v31")
    for r in range(32):
        a(f"v_cvt_pk_bf16_f32 v{KF+r}, v{OO+2*r}, v{OO+2*r+1}")
    for db in range(4):
        for p in range(2):
            r = KF + (db * 2 + p) * 4
            a(f"buffer_store_dwordx4 v[{r}:{r+3}], v1, s[20:23], 0 offen offset:{db*64+p*32}")
    a.label("attn_next")
    a("""
    s_add_u32 s35, s35, 1
    s_cmp_lt_u32 s35, 2
    s_cbranch_scc1 attn_outer
    """)
    a.label("attn_done")
    a.end(kn, 248)
    a.launch(kn, 256, 512, 131072)


def k_qkv2(a, g):
    kn = "qkv_kernel"
    a.begin(kn)
    ntm = S // g.BM
    NT = ntm * 32
    a(f"s_cmp_ge_u32 s2, {3*NT}")
    a("s_cbranch_scc1 qkv_done")
    g_prologue(a, g)
    a(f"""
    s_and_b32 s4, s2, 7
    s_lshr_b32 s5, s2, 3
    s_and_b32 s33, s5, {ntm-1}
    s_mul_i32 s33, s33, {g.BM}       ; m0
    s_lshr_b32 s5, s5, {ntm.bit_length()-1}
    s_and_b32 s6, s5, 3
    s_lshr_b32 s35, s5, 2            ; job
    s_lshl_b32 s37, s4, 2
    s_add_u32 s37, s37, s6           ; head
    s_lshl_b32 s34, s37, 7           ; n0
    s_mov_b32 s31, 0
    s_mov_b32 s32, 0
    s_cmp_eq_u32 s35, 1
    s_cbranch_scc1 qkv_k
    s_cmp_eq_u32 s35, 2
    s_cbranch_scc1 qkv_v
    """)
    for nm in ("q", "k", "v"):
        a.label("qkv_" + nm)
        if nm == "q":
            srd(a, 8, KA["ws"], S * M * 2)
        else:
            srd(a, 8, KA["ckv"], S * M * 2)
        srd(a, 12, KA[{"q": "wq", "k": "wuk", "v": "wuv"}[nm]], 512 * 4096 * 2)
        srd(a, 16, KA["ws"], 16 * MB)
        a("s_waitcnt lgkmcnt(0)")
        if nm == "q":
            srd_off(a, 8, WS["h"])
        srd_off(a, 16, WS[{"q": "q", "k": "k", "v": "vt"}[nm]])
        import os
        g_job(a, g, 1024, 8192, int(os.environ.get("NKQ","8")), nm != "v", False)
        if nm != "v":
            a(f"""
            s_lshl_b32 s4, s37, 11
            s_add_u32 s4, s4, s33
            s_mul_i32 s5, s41, {g.tm*32}
            s_add_u32 s4, s4, s5
            v_add_u32 v28, s4, v24
            v_lshlrev_b32 v28, 8, v28
            s_mul_i32 s5, s42, {g.tn*64}
            v_add_u32 v28, s5, v28
            v_lshl_add_u32 v28, v25, 4, v28
            """)
            g_epi_pack(a, g, False, 32 * 256, 64)
        else:
            a(f"""
            s_mul_i32 s5, s42, {g.tn*32}
            s_add_u32 s4, s34, s5
            v_add_u32 v28, s4, v24
            v_lshlrev_b32 v28, 12, v28
            s_mul_i32 s5, s41, {g.tm*32}
            s_add_u32 s5, s5, s33
            s_lshl_b32 s5, s5, 1
            v_add_u32 v28, s5, v28
            v_lshl_add_u32 v28, v25, 4, v28
            """)
            g_epi_pack(a, g, False, 64, 32 * 4096)
        a("s_branch qkv_done")
    a.label("qkv_done")
    a.end(kn, g.vEnd)
    a.launch(kn, 3 * NT, g.nw * 64, g.lds)


def g_epi_lds(a, g, relu, swap, rstride, hi_stride):
    tm, tn = g.tm, g.tn
    RBY = (g.BN if swap else g.BM) * 2
    NR = g.BM if swap else g.BN
    lr = RBY.bit_length() - 1
    a("s_barrier")
    a(f"""
    s_mul_i32 s4, {'s41' if swap else 's42'}, {(tm if swap else tn)*32}
    s_mul_i32 s5, {'s42' if swap else 's41'}, {(tn if swap else tm)*64}
    v_add_u32 v1, s4, v24
    v_lshlrev_b32 v2, 4, v25
    v_add_u32 v2, s5, v2             ; C0
    v_and_b32 v3, 15, v24
    v_lshlrev_b32 v3, 4, v3          ; swz
    v_lshlrev_b32 v1, {lr}, v1
    """)
    for t in range(tm):
        for u in range(tn):
            c = g.vC + (t * tn + u) * 16
            for p in range(2):
                for j in range(4):
                    r0, r1 = c + p * 8 + j * 2, c + p * 8 + j * 2 + 1
                    if relu:
                        a(f"v_max_f32 v{r0}, 0, v{r0}")
                        a(f"v_max_f32 v{r1}, 0, v{r1}")
                    a(f"v_cvt_pk_bf16_f32 v{c+p*4+j}, v{r0}, v{r1}")
            rr, cc = (t, u) if swap else (u, t)
            for p in range(2):
                a(f"v_add_u32 v4, {cc*64+p*32}, v2")
                a("v_xor_b32 v4, v4, v3")
                a("v_add_u32 v4, v4, v1")
                off = rr * 32 * RBY
                if off >= 65536:
                    a(f"v_add_u32 v4, {off}, v4")
                    off = 0
                a(f"ds_write_b128 v4, v[{c+p*4}:{c+p*4+3}] offset:{off}")
    a("s_waitcnt lgkmcnt(0)")
    a("s_barrier")
    nthr = g.nw * 64
    cpr = RBY // 16
    total = NR * cpr
    nit = total // nthr
    rows_per_it = nthr // cpr
    a(f"""
    v_lshrrev_b32 v1, {cpr.bit_length()-1}, v0
    v_and_b32 v2, {cpr-1}, v0
    v_lshlrev_b32 v2, 4, v2          ; C bytes
    v_lshrrev_b32 v5, 8, v2
    v_and_b32 v6, 255, v2
    s_mov_b32 s4, {hi_stride}
    v_mul_lo_u32 v5, v5, s4
    v_add_u32 v5, v5, v6
    s_mov_b32 s4, {rstride}
    v_mul_lo_u32 v6, v1, s4
    v_add_u32 v5, v5, v6
    v_add_u32 v5, s50, v5            ; global off
    v_lshlrev_b32 v7, {lr}, v1
    """)
    F0 = g.vC
    for it in range(nit):
        a(f"v_add_u32 v3, {it*rows_per_it}, v1")
        a("v_and_b32 v3, 15, v3")
        a("v_lshlrev_b32 v3, 4, v3")
        a("v_xor_b32 v3, v3, v2")
        a("v_add_u32 v3, v3, v7")
        off = it * rows_per_it * RBY
        if off >= 65536:
            a(f"v_add_u32 v3, {off}, v3")
            off = 0
        a(f"ds_read_b128 v[{F0+it*4}:{F0+it*4+3}], v3 offset:{off}")
    for it in range(nit):
        a(f"s_waitcnt lgkmcnt({min(15, nit-1-it)})")
        a(f"s_mov_b32 s4, {it*rows_per_it*rstride}")
        a(f"buffer_store_dwordx4 v[{F0+it*4}:{F0+it*4+3}], v5, s[16:19], s4 offen")


def k_qkv3(a):
    kn = "qkv_kernel"
    gk = G(2, 4, 4, 2, 2)
    gq = G(4, 2, 2, 2, 2)
    a.begin(kn)
    NWG = 512
    a(f"s_cmp_ge_u32 s2, {NWG}")
    a("s_cbranch_scc1 qkv_done")
    a("""
    s_and_b32 s4, s2, 7
    s_bfe_u32 s5, s2, 0x50003
    s_and_b32 s33, s5, 7
    s_lshl_b32 s33, s33, 8           ; m0
    s_lshr_b32 s5, s5, 3             ; 0..3
    s_mov_b32 s31, 0
    s_mov_b32 s32, 0
    s_cmp_ge_u32 s2, 256
    s_cbranch_scc1 qkv_q
    s_lshr_b32 s6, s5, 1             ; 0: K, 1: V
    s_and_b32 s5, s5, 1
    s_lshl_b32 s37, s4, 2
    s_lshl_b32 s5, s5, 1
    s_add_u32 s37, s37, s5
    s_lshl_b32 s34, s37, 7
    s_cmp_eq_u32 s6, 1
    s_cbranch_scc1 qkv_v
    """)
    for nm in ("k", "v", "q"):
        g = gq if nm == "q" else gk
        a.label("qkv_" + nm)
        if nm == "q":
            a("s_lshl_b32 s37, s4, 2")
            a("s_add_u32 s37, s37, s5")
            a("s_lshl_b32 s34, s37, 7")
        g_prologue(a, g)
        srd(a, 8, KA["ws"] if nm == "q" else KA["ckv"], S * M * 2)
        srd(a, 12, KA[{"q": "wq", "k": "wuk", "v": "wuv"}[nm]], 512 * 4096 * 2)
        srd(a, 16, KA["ws"], 16 * MB)
        a("s_waitcnt lgkmcnt(0)")
        if nm == "q":
            srd_off(a, 8, WS["h"])
        srd_off(a, 16, WS[{"q": "q", "k": "k", "v": "vt"}[nm]])
        g_job(a, g, 1024, 8192, 8, nm != "v", False)
        if nm != "v":
            a("s_lshl_b32 s50, s37, 11")
            a("s_add_u32 s50, s50, s33")
            a("s_lshl_b32 s50, s50, 8")
            g_epi_lds(a, g, False, True, 256, 2048 * 256)
        else:
            a("s_lshl_b32 s50, s34, 12")
            a("s_lshl_b32 s5, s33, 1")
            a("s_add_u32 s50, s50, s5")
            g_epi_lds(a, g, False, False, 4096, 256)
        a("s_branch qkv_done")
    a.label("qkv_done")
    a.end(kn, max(gk.vEnd, gq.vEnd))
    a.launch(kn, NWG, 512, max(gk.lds, gq.lds))


def k_oproj_split(a):
    g = G(2, 2, 2, 2, 5)
    kn = "oproj_kernel"
    a.begin(kn)
    done = a.newlabel("g_done")
    a(f"s_cmp_ge_u32 s2, 256")
    a(f"s_cbranch_scc1 {done}")
    g_prologue(a, g)
    a(f"""
    s_and_b32 s33, s2, 7
    s_lshl_b32 s33, s33, 1
    s_bfe_u32 s4, s2, 0x10003
    s_add_u32 s33, s33, s4
    s_lshl_b32 s33, s33, 7
    s_bfe_u32 s34, s2, 0x20004
    s_lshl_b32 s34, s34, 7
    s_lshr_b32 s37, s2, 6            ; split
    s_lshl_b32 s31, s37, 11          ; A k off = split*1024*2
    s_lshl_b32 s32, s37, 20          ; B k off = split*1024*1024
    """)
    srd(a, 8, KA["ws"], 16 * MB)
    srd(a, 12, KA["wo"], 4096 * 1024)
    srd(a, 16, KA["ws"], 16 * MB)
    a("s_waitcnt lgkmcnt(0)")
    srd_off(a, 8, WS["ctx"])
    srd_off(a, 16, WS["part"])
    g_job(a, g, 8192, 1024, 16, True, True)
    g_mn(a, g, 512)
    a("v_lshl_add_u32 v28, v25, 2, v28")
    a("v_lshlrev_b32 v28, 2, v28")
    a("s_lshl_b32 s5, s37, 22")
    a("v_add_u32 v28, s5, v28")
    for t in range(2):
        a(f"s_mov_b32 s4, {t*32*512*4}")
        for u in range(2):
            c = g.vC + (t * 2 + u) * 16
            for q in range(4):
                a(f"buffer_store_dwordx4 v[{c+q*4}:{c+q*4+3}], v28, s[16:19], s4 offen offset:{(u*32+q*8)*4}")
    a.label(done)
    a.end(kn, g.vEnd)
    a.launch(kn, 256, 256, g.lds)


def k_ln2(a):
    kn = "ln2_kernel"
    a.begin(kn)
    NWG = S // 4
    done = a.newlabel("ln_done")
    a(f"s_cmp_ge_u32 s2, {NWG}")
    a(f"s_cbranch_scc1 {done}")
    srd(a, 8, KA["x"], S * M * 2)
    srd(a, 12, KA["ws"], 3072 * 4)
    srd(a, 16, KA["ws"], S * M * 2)
    srd(a, 20, KA["ws"], 16 * MB)
    srd(a, 24, KA["ws"], S * M * 4)
    a(f"""
    v_lshrrev_b32 v1, 6, v0
    v_and_b32 v2, 63, v0
    s_lshl_b32 s3, s2, 2
    v_add_u32 v1, s3, v1
    v_lshlrev_b32 v3, 11, v1
    v_lshl_add_u32 v3, v2, 5, v3     ; f32 off
    v_lshlrev_b32 v4, 5, v2
    v_lshlrev_b32 v5, 10, v1
    v_lshl_add_u32 v5, v2, 4, v5     ; bf16 off
    v_lshlrev_b32 v6, 2, v2
    s_waitcnt lgkmcnt(0)
    """)
    srd_off(a, 16, WS["h2"])
    srd_off(a, 20, WS["part"])
    srd_off(a, 24, WS["x1"])
    a("buffer_load_dwordx4 v[24:27], v5, s[8:11], 0 offen")
    for sp in range(4):
        a(f"s_mov_b32 s4, {sp*4*MB}")
        a(f"buffer_load_dwordx4 v[{48+sp*8}:{51+sp*8}], v3, s[20:23], s4 offen")
        a(f"buffer_load_dwordx4 v[{52+sp*8}:{55+sp*8}], v3, s[20:23], s4 offen offset:16")
    a(f"s_mov_b32 s4, {1024*4}")
    a("buffer_load_dwordx4 v[80:83], v4, s[12:15], s4 offen")
    a("buffer_load_dwordx4 v[84:87], v4, s[12:15], s4 offen offset:16")
    a(f"s_mov_b32 s4, {2048*4}")
    a(f"s_mov_b32 s5, {1536*4}")
    a("buffer_load_dwordx4 v[32:35], v4, s[12:15], s4 offen")
    a("buffer_load_dwordx4 v[36:39], v4, s[12:15], s4 offen offset:16")
    a("buffer_load_dwordx4 v[40:43], v4, s[12:15], s5 offen")
    a("buffer_load_dwordx4 v[44:47], v4, s[12:15], s5 offen offset:16")
    a("s_waitcnt vmcnt(4)")
    for i in range(8):
        a(f"v_add_f32 v{48+i}, v{48+i}, v{56+i}")
        a(f"v_add_f32 v{64+i}, v{64+i}, v{72+i}")
        a(f"v_add_f32 v{48+i}, v{48+i}, v{64+i}")
    for i in range(4):
        a(f"v_lshlrev_b32 v{8+2*i}, 16, v{24+i}")
        a(f"v_and_b32 v{9+2*i}, 0xffff0000, v{24+i}")
    for i in range(8):
        a(f"v_fmac_f32 v{8+i}, v{48+i}, v{80+i}")
    a("buffer_store_dwordx4 v[8:11], v3, s[24:27], 0 offen")
    a("buffer_store_dwordx4 v[12:15], v3, s[24:27], 0 offen offset:16")
    a("v_add_f32 v16, v8, v9")
    for i in range(2, 8):
        a(f"v_add_f32 v16, v16, v{8+i}")
    wave_sum(a, 16, 17, 6)
    a("v_mul_f32 v16, 0x3b000000, v16")
    for i in range(8):
        a(f"v_sub_f32 v{48+i}, v{8+i}, v16")
    a("v_mul_f32 v18, v48, v48")
    for i in range(1, 8):
        a(f"v_fmac_f32 v18, v{48+i}, v{48+i}")
    wave_sum(a, 18, 17, 6)
    a("""
    v_mov_b32 v19, 0x3727c5ac
    v_fmac_f32 v19, 0x3b000000, v18
    v_rsq_f32 v19, v19
    s_waitcnt vmcnt(2)
    """)
    for i in range(8):
        a(f"v_add_f32 v{32+i}, 1.0, v{32+i}")
        a(f"v_mul_f32 v{48+i}, v{48+i}, v19")
        a(f"v_fma_f32 v{48+i}, v{48+i}, v{32+i}, v{40+i}")
    for i in range(4):
        a(f"v_cvt_pk_bf16_f32 v{20+i}, v{48+2*i}, v{49+2*i}")
    a("buffer_store_dwordx4 v[20:23], v5, s[16:19], 0 offen")
    a.label(done)
    a.end(kn, 88)
    a.launch(kn, NWG, 256, 0)


def build():
    a = Asm()
    k_mod(a)
    k_ln(a, "ln1_kernel", KA["x"], 0, False, 0, 2048, WS["h"])
    k_qkv3(a)
    k_attn2(a)
    k_tail2(a)
    return a


if __name__ == "__main__":
    a = build()
    out = sys.argv[1] if len(sys.argv) > 1 else f"cdna_kernels/{NAME}.s"
    open(out, "w").write(a.text())
    print("wrote", out, len(a.text()))
```
